```python
import torch

def _softmax(x, axis=-1):
    return torch.softmax(x, dim=axis)
def _gelu(x):
    return torch.nn.functional.gelu(x, approximate="tanh")
def _silu(x):
    return torch.nn.functional.silu(x)
def _sigmoid(x):
    return torch.sigmoid(x)
def _layernorm(x, axis=-1, eps=1e-5):
    m = x.mean(dim=axis, keepdim=True)
    v = x.var(dim=axis, keepdim=True, unbiased=False)
    return (x - m) / torch.sqrt(v + eps)
def _scatter_add(tgt, idx, src, axis=0):
    return tgt.clone().index_add_(axis, idx, src)
def _segment_sum(src, seg, n):
    out = torch.zeros((n,) + src.shape[1:], dtype=src.dtype)
    return out.index_add_(0, seg, src)
def _pad(x, pw):
    flat = tuple(v for pair in reversed(pw) for v in pair)
    return torch.nn.functional.pad(x, flat)

kernel_name = 'standalone__fused_io_aware_attn__prompt'

def setup_inputs():

    _w = (lambda a: (lambda t: t.to(torch.bfloat16) if t.is_floating_point() else t)(torch.as_tensor(a)))
    B, H, S = 2, 32, 2048
    Dh = max(1, 1024 // 32)
    return {
        "q": _w((lambda *s: torch.randn(*s, dtype=torch.bfloat16) * 0.8)(B, H, S, Dh)),
        "k": _w((lambda *s: torch.randn(*s, dtype=torch.bfloat16) * 0.8)(B, H, S, Dh)),
        "v": _w((lambda *s: torch.randn(*s, dtype=torch.bfloat16) * 0.05)(B, H, S, Dh)),
    }

def reference(q, k, v):
    scale = q.shape[-1] ** -0.5
    s = torch.einsum('bhqd,bhkd->bhqk', q, k) * scale
    p = _softmax(s, axis=-1)
    return torch.einsum('bhqk,bhkd->bhqd', p, v)
```

```python
import sys, struct

NAME = "standalone__fused_io_aware_attn__prompt"
out = []
def I(s): out.append("  " + s)
def Lb(s): out.append(s + ":")
def C(s): out.append("  ; " + s)

def f32hex(x): return "0x%08x" % struct.unpack("<I", struct.pack("<f", x))[0]
CSCALE = (32 ** -0.5) * 1.4426950408889634

class Alloc:
    def __init__(s, base): s.n = base
    def get(s, k, al=4):
        s.n = (s.n + al - 1) // al * al
        r = s.n; s.n += k; return r
va = Alloc(0)
vT = va.get(8, 1)
vQoff = va.get(1, 1); vDK = va.get(1, 1); vDV = va.get(1, 1)
vKl0 = va.get(1, 1); vKl1 = va.get(1, 1); vVl = va.get(1, 1)
vKa0 = va.get(1, 1); vKa1 = va.get(1, 1); vVa = va.get(1, 1)
vIdx = va.get(1, 1); vFV = va.get(1, 1)
vOnes = va.get(4)
vQ = [[va.get(4) for j in range(2)] for t in range(2)]
vC = [va.get(16) for t in range(2)]
vO = [va.get(16) for t in range(2)]
vL = [va.get(4) for t in range(2)]
vS = [va.get(16) for b in range(4)]
vK = [va.get(8) for b in range(2)]
vV = [va.get(8) for b in range(2)]
NVGPR = va.n
def R(b, n): return f"v[{b}:{b+n-1}]"

sQ, sK, sV, sO = 12, 16, 20, 24
sHead, sWave, sQoff, sG, sM, sStage, sSlot, sT0, sT1, sT2 = 28, 29, 30, 31, 32, 33, 34, 35, 36, 37
def SR(b): return f"s[{b}:{b+3}]"

def mfma(d, a, b, c):
    cs = "0" if c is None else R(c, 16)
    I(f"v_mfma_f32_32x32x16_bf16 {R(d,16)}, {R(a,4)}, {R(b,4)}, {cs}")
def smf32(d, a, b): I(f"v_smfmac_f32_32x32x32_bf16 {R(d,16)}, {R(a,4)}, {R(b,8)}, v{vIdx}")
def smf16(d, b): I(f"v_smfmac_f32_16x16x64_bf16 {R(d,4)}, {R(vOnes,4)}, {R(b,8)}, v{vIdx}")
def vexp(r): I(f"v_exp_f32 v{r}, v{r}")

def kread(tile, buf):
    I(f"ds_read_b128 {R(vK[buf],4)}, v{vKa0} offset:{tile*2048}")
    I(f"ds_read_b128 {R(vK[buf]+4,4)}, v{vKa1} offset:{tile*2048}")
def vread_list(tile, buf):
    return [f"ds_read_b64_tr_b16 {R(vV[buf]+4*j+2*x,2)}, v{vVa} offset:{16384+tile*2048+j*1024+x*256}" for j in range(2) for x in range(2)]

def dma_stage():
    I(f"s_mov_b32 m0, s{sM}")
    I("s_nop 0")
    I(f"buffer_load_dwordx4 v{vDK}, {SR(sK)}, s{sG} offen lds")
    I(f"buffer_load_dwordx4 v{vDK}, {SR(sK)}, s{sG} offen offset:1024 lds")
    I(f"s_add_u32 m0, s{sM}, 16384")
    I("s_nop 0")
    I(f"buffer_load_dwordx4 v{vDV}, {SR(sV)}, s{sG} offen lds")
    I(f"buffer_load_dwordx4 v{vDV}, {SR(sV)}, s{sG} offen offset:1024 lds")
    I(f"s_add_u32 s{sG}, s{sG}, 16384")
    I(f"s_add_u32 s{sM}, s{sM}, 32768")
    I(f"s_and_b32 s{sM}, s{sM}, 0x1ffff")

def rowmax_to_C(t, src, first=True):
    m = vT + 4 + t
    I(f"v_max3_f32 v{m}, v{src}, v{src+1}, v{src+2}")
    for k in range(3, 15, 2):
        I(f"v_max3_f32 v{m}, v{m}, v{src+k}, v{src+k+1}")
    I(f"v_max_f32 v{m}, v{m}, v{src+15}")

def crosshalf_to_C(t):
    m = vT + 4 + t
    I(f"v_mov_b32 v{vT+6}, v{m}")
    I("s_nop 1")
    I(f"v_permlane32_swap_b32 v{vT+6}, v{m}")
    I("s_nop 1")
    I(f"v_max_f32 v{m}, v{m}, v{vT+6}")
    for i in range(16):
        I(f"v_sub_f32 v{vC[t]+i}, 0, v{m}")

hdr = open("cdna_kernels/%s.s.ref" % NAME).read().split("\n")
for l in hdr:
    if l.startswith("; @launch"):
        out.append("; @launch grid=(256,1,1) block=(512,1,1) lds=131072")
    elif l.startswith(";"):
        out.append(l)
    else:
        break
out += ['.amdgcn_target "amdgcn-amd-amdhsa--gfx950"', ".text", f".globl {NAME}_kernel", ".p2align 8",
        f".type {NAME}_kernel,@function", f"{NAME}_kernel:"]

I("s_cmp_ge_u32 s2, 256")
I("s_cbranch_scc1 L_end")
I("s_load_dwordx4 s[4:7], s[0:1], 0")
I("s_load_dwordx4 s[8:11], s[0:1], 16")
I("v_lshrrev_b32 v1, 6, v0")
I("v_and_b32 v2, 63, v0")
I("s_and_b32 s3, s2, 7")
I(f"s_lshr_b32 s{sT0}, s2, 3")
I(f"v_readfirstlane_b32 s{sWave}, v1")
I("s_lshl_b32 s3, s3, 3")
I(f"s_lshr_b32 s{sT1}, s{sT0}, 2")
I(f"s_add_u32 s3, s3, s{sT1}")
I(f"s_lshl_b32 s{sHead}, s3, 17")
I(f"s_and_b32 s{sT0}, s{sT0}, 3")
I(f"s_lshl_b32 s{sT0}, s{sT0}, 15")
I(f"s_add_u32 s{sQoff}, s{sHead}, s{sT0}")
I(f"s_lshl_b32 s{sT1}, s{sWave}, 12")
I(f"s_add_u32 s{sQoff}, s{sQoff}, s{sT1}")
I(f"s_lshl_b32 s{sM}, s{sWave}, 11")
I(f"s_add_u32 s{sG}, s{sHead}, s{sM}")
I("v_and_b32 v3, 31, v2")
I("v_lshrrev_b32 v4, 5, v2")
I("v_lshlrev_b32 v5, 6, v3")
I(f"v_lshl_add_u32 v{vQoff}, v4, 4, v5")
I("v_lshrrev_b32 v6, 4, v2")
I("v_and_b32 v7, 3, v2")
I("v_xor_b32 v6, v6, v7")
I("v_lshrrev_b32 v7, 2, v2")
I("v_lshlrev_b32 v7, 6, v7")
I(f"v_lshl_add_u32 v{vDK}, v6, 4, v7")
I(f"v_lshlrev_b32 v{vDV}, 4, v2")
I("s_waitcnt lgkmcnt(0)")
for sr, p in ((sQ, 4), (sK, 6), (sV, 8), (sO, 10)):
    I(f"s_mov_b32 s{sr}, s{p}")
    I(f"s_and_b32 s{sr+1}, s{p+1}, 0xffff")
    I(f"s_mov_b32 s{sr+2}, 8388608")
    I(f"s_mov_b32 s{sr+3}, 0x00020000")
for t in range(2):
    for j in range(2):
        I(f"buffer_load_dwordx4 {R(vQ[t][j],4)}, v{vQoff}, {SR(sQ)}, s{sQoff} offen offset:{t*2048+j*32}")
for st in range(3):
    dma_stage()
I("v_lshrrev_b32 v6, 2, v3")
I("v_and_b32 v6, 3, v6")
I("v_xor_b32 v6, v6, v4")
I(f"v_lshl_add_u32 v{vKl0}, v6, 4, v5")
I(f"v_xor_b32 v{vKl1}, 32, v{vKl0}")
I("v_and_b32 v6, 15, v2")
I("v_lshrrev_b32 v7, 2, v6")
I("v_lshl_add_u32 v7, v4, 3, v7")
I("v_lshlrev_b32 v7, 6, v7")
I("v_and_b32 v6, 3, v6")
I("v_lshl_add_u32 v7, v6, 3, v7")
I("v_bfe_u32 v6, v2, 4, 1")
I(f"v_lshl_add_u32 v{vVl}, v6, 5, v7")
I(f"v_mov_b32 v{vKa0}, v{vKl0}")
I(f"v_mov_b32 v{vKa1}, v{vKl1}")
I(f"v_mov_b32 v{vVa}, v{vVl}")
I(f"v_mov_b32 v{vIdx}, 0xdddddddd")
I("v_lshlrev_b32 v6, 9, v4")
I(f"v_lshl_add_u32 v{vFV}, v3, 1, v6")
I("v_bfe_u32 v6, v2, 2, 1")
I("v_cmp_eq_u32 vcc, 0, v6")
I("v_mov_b32 v7, 0x3f803f80")
I("s_nop 1")
I(f"v_cndmask_b32 v{vOnes}, 0, v7, vcc")
I(f"v_cndmask_b32 v{vOnes+1}, 0, v7, vcc")
I(f"v_cndmask_b32 v{vOnes+2}, v7, 0, vcc") if False else None
I(f"v_sub_u32 v{vOnes+2}, v7, v{vOnes}")
I(f"v_sub_u32 v{vOnes+3}, v7, v{vOnes}")
for t in range(2):
    for i in range(16): I(f"v_mov_b32 v{vO[t]+i}, 0")
    for i in range(4): I(f"v_mov_b32 v{vL[t]+i}, 0")
for i in range(8, 16): I(f"v_mov_b32 v{vS[3]+i}, 0")
for i in range(4, 8): I(f"v_mov_b32 v{vV[1]+i}, 0")
I(f"s_mov_b32 s{sStage}, 0")
I(f"s_mov_b32 s{sSlot}, 0")
I(f"s_mov_b32 s{sT2}, {f32hex(CSCALE)}")
I("s_waitcnt vmcnt(12)")
for t in range(2):
    for j in range(2):
        for i in range(4):
            r = vQ[t][j] + i
            I(f"v_lshlrev_b32 v6, 16, v{r}")
            I(f"v_and_b32 v7, 0xffff0000, v{r}")
            I(f"v_mul_f32 v6, s{sT2}, v6")
            I(f"v_mul_f32 v7, s{sT2}, v7")
            I(f"v_cvt_pk_bf16_f32 v{r}, v6, v7")
I("s_waitcnt vmcnt(8)")
I("s_barrier")
kread(0, 0)
for l in vread_list(0, 0): I(l)
I("s_waitcnt lgkmcnt(4)")
for t in range(2):
    mfma(vS[t], vK[0], vQ[t][0], None)
    mfma(vS[t], vK[0] + 4, vQ[t][1], vS[t])
I("s_nop 15")
rowmax_to_C(0, vS[0])
rowmax_to_C(1, vS[1])
crosshalf_to_C(0)
crosshalf_to_C(1)
I("s_nop 1")
mfma(vS[0], vK[0], vQ[0][0], vC[0])
mfma(vS[0], vK[0] + 4, vQ[0][1], vS[0])
I("s_nop 15")

out.append(".p2align 6")
Lb("L_loop")
for u in range(16):
    C(f"---- phase {u}")
    t, j, b = u & 1, u >> 1, u & 3
    un = u + 1; tn, jn, bn = un & 1, un >> 1, un & 3
    up = u - 1; tp, jp, bp = up & 1, up >> 1, up & 3
    S = vS[b]
    extra = {}
    if u == 14:
        I("s_waitcnt vmcnt(0)")
        I("s_barrier")
        I(f"s_add_u32 s{sSlot}, s{sSlot}, 32768")
        I(f"s_and_b32 s{sSlot}, s{sSlot}, 0x1ffff")
        I(f"v_add_u32 v{vKa0}, s{sSlot}, v{vKl0}")
        I(f"v_add_u32 v{vKa1}, s{sSlot}, v{vKl1}")
        I(f"v_add_u32 v{vVa}, s{sSlot}, v{vVl}")
        I(f"s_cmp_lt_u32 s{sStage}, 5")
        I("s_cbranch_scc0 L_nodma")
        dma_stage()
        Lb("L_nodma")
    if t == 1:
        I("s_waitcnt lgkmcnt(0)")
    mfma(vS[bn], vK[jn & 1], vQ[tn][0], vC[tn])
    vexp(S + 0)
    if t == 0:
        kt = (j + 1) & 7
        I(f"ds_read_b128 {R(vK[(j+1)&1],4)}, v{vKa0} offset:{kt*2048}")
        vexp(S + 1)
        I(f"ds_read_b128 {R(vK[(j+1)&1]+4,4)}, v{vKa1} offset:{kt*2048}")
        vexp(S + 2)
    else:
        vl = vread_list((j + 1) & 7, (j + 1) & 1)
        vexp(S + 1)
        vexp(S + 2)
    mfma(vS[bn], vK[jn & 1] + 4, vQ[tn][1], vS[bn])
    vexp(S + 3); vexp(S + 4); vexp(S + 5)
    smf32(vO[tp], vV[jp & 1] + 4, vS[bp] + 8)
    vexp(S + 6)
    if t == 1: I(vl[0])
    vexp(S + 7)
    if t == 1: I(vl[1])
    vexp(S + 8)
    smf16(vL[tp], vS[bp] + 8)
    vexp(S + 9)
    if t == 1: I(vl[2])
    vexp(S + 10)
    if t == 0:
        I("s_waitcnt lgkmcnt(2)")
    else:
        I(vl[3])
    smf32(vO[t], vV[j & 1], S)
    vexp(S + 11); vexp(S + 12); vexp(S + 13)
    smf16(vL[t], S)
    vexp(S + 14); vexp(S + 15)
I(f"s_add_u32 s{sStage}, s{sStage}, 1")
I(f"s_cmp_lt_u32 s{sStage}, 8")
I("s_cbranch_scc1 L_loop")
I("s_nop 1")
smf32(vO[1], vV[1] + 4, vS[3] + 8)
smf16(vL[1], vS[3] + 8)
I("s_waitcnt lgkmcnt(0)")
I("s_nop 15")
I("s_nop 3")
z = vT + 6
I(f"v_maximum3_f32 v{z}, |v{vL[0]}|, |v{vL[1]}|, |v{vO[0]}|")
allo = [vO[0] + i for i in range(1, 16)] + [vO[1] + i for i in range(16)]
k = 0
while k < len(allo):
    a = allo[k]; b2 = allo[k + 1] if k + 1 < len(allo) else allo[k]
    I(f"v_maximum3_f32 v{z}, v{z}, |v{a}|, |v{b2}|")
    k += 2
I(f"v_mov_b32 v{vT+7}, 0x7f800000")
I(f"v_cmp_lt_f32 vcc, v{z}, v{vT+7}")
I("s_nop 1")
I("s_cmp_eq_u64 vcc, -1")
I("s_cbranch_scc0 L_fallback")
Lb("L_store")
for t in range(2):
    I(f"v_rcp_f32 v{vT+4+t}, v{vL[t]}")
I("s_nop 0")
for t in range(2):
    for i in range(16):
        I(f"v_mul_f32 v{vO[t]+i}, v{vO[t]+i}, v{vT+4+t}")
for t in range(2):
    P = vS[t]
    for i in range(8):
        I(f"v_cvt_pk_bf16_f32 v{P+i}, v{vO[t]+2*i}, v{vO[t]+2*i+1}")
I("s_nop 1")
for t in range(2):
    P = vS[t]
    for g in (0, 2):
        I(f"v_permlane32_swap_b32 v{P+2*g}, v{P+2*g+2}")
        I(f"v_permlane32_swap_b32 v{P+2*g+1}, v{P+2*g+3}")
I("s_nop 1")
for t in range(2):
    P = vS[t]
    for g in (0, 2):
        I(f"buffer_store_dwordx4 {R(P+2*g,4)}, v{vQoff}, {SR(sO)}, s{sQoff} offen offset:{t*2048+g*16}")
Lb("L_end")
I("s_endpgm")

Lb("L_fallback")
I(f"s_mov_b32 s{sG}, s{sHead}")
I(f"s_mov_b32 s{sStage}, 0")
I(f"v_mov_b32 v{vT+4}, 0xff800000")
I(f"v_mov_b32 v{vT+5}, 0xff800000")
Lb("L_fb1")
for j in range(2):
    I(f"buffer_load_dwordx4 {R(vK[0]+4*j,4)}, v{vQoff}, {SR(sK)}, s{sG} offen offset:{j*32}")
I("s_waitcnt vmcnt(0)")
for t in range(2):
    mfma(vS[t], vK[0], vQ[t][0], None)
    mfma(vS[t], vK[0] + 4, vQ[t][1], vS[t])
I("s_nop 15")
I("s_nop 3")
for t in range(2):
    m = vT + 4 + t
    for k in range(0, 16, 2):
        I(f"v_max3_f32 v{m}, v{m}, v{vS[t]+k}, v{vS[t]+k+1}")
I(f"s_add_u32 s{sG}, s{sG}, 2048")
I(f"s_add_u32 s{sStage}, s{sStage}, 1")
I(f"s_cmp_lt_u32 s{sStage}, 64")
I("s_cbranch_scc1 L_fb1")
crosshalf_to_C(0)
crosshalf_to_C(1)
for t in range(2):
    for i in range(16): I(f"v_mov_b32 v{vO[t]+i}, 0")
    for i in range(4): I(f"v_mov_b32 v{vL[t]+i}, 0")
I(f"s_mov_b32 s{sG}, s{sHead}")
I(f"s_mov_b32 s{sStage}, 0")
Lb("L_fb2")
for j in range(2):
    I(f"buffer_load_dwordx4 {R(vK[0]+4*j,4)}, v{vQoff}, {SR(sK)}, s{sG} offen offset:{j*32}")
for j in range(2):
    for e in range(8):
        op = "buffer_load_short_d16_hi" if e & 1 else "buffer_load_short_d16"
        I(f"{op} v{vV[0]+4*j+(e>>1)}, v{vFV}, {SR(sV)}, s{sG} offen offset:{(16*j+e)*64}")
I("s_waitcnt vmcnt(0)")
for t in range(2):
    mfma(vS[t], vK[0], vQ[t][0], vC[t])
    mfma(vS[t], vK[0] + 4, vQ[t][1], vS[t])
I("s_nop 15")
I("s_nop 3")
for t in range(2):
    for i in range(16): vexp(vS[t] + i)
I("s_nop 3")
for t in range(2):
    smf32(vO[t], vV[0], vS[t])
    smf32(vO[t], vV[0] + 4, vS[t] + 8)
    smf16(vL[t], vS[t])
    smf16(vL[t], vS[t] + 8)
I(f"s_add_u32 s{sG}, s{sG}, 2048")
I(f"s_add_u32 s{sStage}, s{sStage}, 1")
I(f"s_cmp_lt_u32 s{sStage}, 64")
I("s_nop 15")
I("s_cbranch_scc1 L_fb2")
I("s_nop 15")
I("s_branch L_store")

nv = (NVGPR + 3) // 4 * 4
out += ['.section .rodata,"a"', ".p2align 6", f".amdhsa_kernel {NAME}_kernel",
        f"  .amdhsa_next_free_vgpr {nv}", "  .amdhsa_next_free_sgpr 48", f"  .amdhsa_accum_offset {nv}",
        "  .amdhsa_group_segment_fixed_size 0", "  .amdhsa_kernarg_size 48", "  .amdhsa_user_sgpr_count 2",
        "  .amdhsa_user_sgpr_kernarg_segment_ptr 1", "  .amdhsa_system_sgpr_workgroup_id_x 1",
        ".end_amdhsa_kernel", ""]
dst = sys.argv[1] if len(sys.argv) > 1 else f"cdna_kernels/{NAME}.s"
open(dst, "w").write("\n".join(out))
print("wrote", dst, "vgprs", NVGPR)
```

```python
import sys, struct, os
STAMP = bool(os.environ.get("STAMP"))
OPT = set(os.environ.get("OPT", "").split(","))
NAME = "standalone__fused_io_aware_attn__prompt"
out = []
def I(s): out.append("  " + s)
def Lb(s): out.append(s + ":")
def C(s): out.append("  ; " + s)
def f32hex(x): return "0x%08x" % struct.unpack("<I", struct.pack("<f", x))[0]
CSCALE = (32 ** -0.5) * 1.4426950408889634

class Alloc:
    def __init__(s, base): s.n = base
    def get(s, k, al=4):
        s.n = (s.n + al - 1) // al * al
        r = s.n; s.n += k; return r
va = Alloc(0)
vT = va.get(8, 1)
vQoff = va.get(1, 1); vDK = va.get(1, 1); vDV = va.get(1, 1)
vKl0 = va.get(1, 1); vKl1 = va.get(1, 1); vVl = va.get(1, 1)
vKa0 = va.get(1, 1); vKa1 = va.get(1, 1); vVa = va.get(1, 1)
vIdx = va.get(1, 1); vFV = va.get(1, 1); vXw = va.get(1, 1); vXr = va.get(1, 1)
vOnes = va.get(4)
vQ = [[va.get(4) for j in range(2)] for t in range(4)]
vO = [va.get(16) for t in range(4)]
vL = [va.get(4) for t in range(4)]
vS = [va.get(16) for b in range(4)]
vK = [va.get(8) for b in range(2)]
vV = [va.get(8) for b in range(2)]
NVGPR = va.n
def R(b, n): return f"v[{b}:{b+n-1}]"

sQ, sK, sV, sO = 12, 16, 20, 24
sHead, sWave, sQA, sG, sM, sStage, sSlot, sT0, sT1, sT2, sQB, sHk = 28, 29, 30, 31, 32, 33, 34, 35, 36, 37, 38, 39
def SR(b): return f"s[{b}:{b+3}]"

def mfma(d, a, b, c):
    cs = "0" if c is None else R(c, 16)
    I(f"v_mfma_f32_32x32x16_bf16 {R(d,16)}, {R(a,4)}, {R(b,4)}, {cs}")
def smf32(d, a, b): I(f"v_smfmac_f32_32x32x32_bf16 {R(d,16)}, {R(a,4)}, {R(b,8)}, v{vIdx}")
def smf16(d, b): I(f"v_smfmac_f32_16x16x64_bf16 {R(d,4)}, {R(vOnes,4)}, {R(b,8)}, v{vIdx}")
def vexp(r): I(f"v_exp_f32 v{r}, v{r}")
def kread_list(jl, buf):
    return [f"ds_read_b128 {R(vK[buf],4)}, v{vKa0} offset:{jl*4096}", f"ds_read_b128 {R(vK[buf]+4,4)}, v{vKa1} offset:{jl*4096}"]
def vread_list(jl, buf):
    return [f"ds_read_b64_tr_b16 {R(vV[buf]+4*j+2*x,2)}, v{vVa} offset:{16384+jl*4096+j*1024+x*256}" for j in range(2) for x in range(2)]
def dma_k():
    return [f"s_mov_b32 m0, s{sM}", "s_nop 0",
            f"buffer_load_dwordx4 v{vDK}, {SR(sK)}, s{sG} offen lds",
            f"buffer_load_dwordx4 v{vDK}, {SR(sK)}, s{sG} offen offset:1024 lds"]
def dma_v():
    return [f"s_add_u32 m0, s{sM}, 16384", "s_nop 0",
            f"buffer_load_dwordx4 v{vDV}, {SR(sV)}, s{sG} offen lds",
            f"buffer_load_dwordx4 v{vDV}, {SR(sV)}, s{sG} offen offset:1024 lds",
            f"s_add_u32 s{sG}, s{sG}, 16384", f"s_add_u32 s{sM}, s{sM}, 32768", f"s_and_b32 s{sM}, s{sM}, 0x1ffff"]
def dma_stage():
    for l in dma_k() + dma_v(): I(l)
pst = [52]
def pstamp():
    if not STAMP: return
    I("s_memtime s[40:41]"); I("s_memrealtime s[46:47]"); I("s_waitcnt lgkmcnt(0)")
    I(f"s_mov_b32 s{pst[0]}, s40"); I(f"s_mov_b32 s{pst[0]+1}, s46"); pst[0] += 2
def stamp():
    if not STAMP: return
    I("s_memtime s[40:41]"); I("s_memrealtime s[46:47]"); I("s_waitcnt lgkmcnt(0)")
    I("v_mov_b32 v4, s40"); I("v_mov_b32 v5, s46"); I("v_mov_b32 v7, s44")
    I("global_store_dwordx2 v7, v[4:5], s[42:43]"); I("s_add_u32 s44, s44, 8")

hdr = open("cdna_kernels/%s.s.ref" % NAME).read().split("\n")
for l in hdr:
    if l.startswith("; @launch"): out.append("; @launch grid=(256,1,1) block=(512,1,1) lds=131072")
    elif l.startswith(";"): out.append(l)
    else: break
out += ['.amdgcn_target "amdgcn-amd-amdhsa--gfx950"', ".text", f".globl {NAME}_kernel", ".p2align 8",
        f".type {NAME}_kernel,@function", f"{NAME}_kernel:"]

I("s_load_dwordx8 s[4:11], s[0:1], 0")
if STAMP:
    I("s_load_dwordx2 s[42:43], s[0:1], 40")
    I("s_memtime s[48:49]"); I("s_memrealtime s[50:51]")
I("s_cmp_ge_u32 s2, 256")
I("s_cbranch_scc1 L_end")
if "nopf" not in OPT:
    I("s_getpc_b64 s[40:41]")
    Lb("L_pc")
    I("v_lshlrev_b32 v1, 4, v0")
    I("v_min_u32 v1, L_end-L_pc-12, v1")
    I(f"global_load_dwordx4 {R(vS[2],4)}, v1, s[40:41]")
I("v_lshrrev_b32 v1, 6, v0")
I("v_and_b32 v2, 63, v0")
I("s_and_b32 s3, s2, 7")
I(f"s_lshr_b32 s{sT0}, s2, 3")
I(f"v_readfirstlane_b32 s{sWave}, v1")
I("s_lshl_b32 s3, s3, 3")
I(f"s_lshr_b32 s{sT1}, s{sT0}, 2")
I(f"s_add_u32 s3, s3, s{sT1}")
I(f"s_lshl_b32 s{sHead}, s3, 17")
I(f"s_and_b32 s{sT0}, s{sT0}, 3")
I(f"s_lshl_b32 s{sT0}, s{sT0}, 15")
I(f"s_add_u32 s{sT0}, s{sHead}, s{sT0}")
I(f"s_and_b32 s{sT1}, s{sWave}, 3")
I(f"s_lshl_b32 s{sT1}, s{sT1}, 13")
I(f"s_add_u32 s{sT0}, s{sT0}, s{sT1}")
I(f"s_lshr_b32 s{sHk}, s{sWave}, 2")
I(f"s_lshl_b32 s{sT1}, s{sHk}, 12")
I(f"s_add_u32 s{sQA}, s{sT0}, s{sT1}")
I(f"s_xor_b32 s{sT1}, s{sT1}, 4096")
I(f"s_add_u32 s{sQB}, s{sT0}, s{sT1}")
I(f"s_lshl_b32 s{sM}, s{sWave}, 11")
I(f"s_add_u32 s{sG}, s{sHead}, s{sM}")
I("v_and_b32 v3, 31, v2")
I("v_lshrrev_b32 v4, 5, v2")
I("v_lshlrev_b32 v5, 6, v3")
I(f"v_lshl_add_u32 v{vQoff}, v4, 4, v5")
I("v_lshrrev_b32 v6, 4, v2")
I("v_and_b32 v7, 3, v2")
I("v_xor_b32 v6, v6, v7")
I("v_lshrrev_b32 v7, 2, v2")
I("v_lshlrev_b32 v7, 6, v7")
I(f"v_lshl_add_u32 v{vDK}, v6, 4, v7")
I(f"v_lshlrev_b32 v{vDV}, 4, v2")
for sr in (sQ, sK, sV, sO):
    I(f"s_mov_b32 s{sr+2}, 8388608")
    I(f"s_mov_b32 s{sr+3}, 0x00020000")
I("s_waitcnt lgkmcnt(0)")
for sr, p in ((sQ, 4), (sK, 6), (sV, 8), (sO, 10)):
    I(f"s_mov_b32 s{sr}, s{p}")
    I(f"s_and_b32 s{sr+1}, s{p+1}, 0xffff")
pstamp()
for t in range(2):
    for j in range(2):
        I(f"buffer_load_dwordx4 {R(vQ[t][j],4)}, v{vQoff}, {SR(sQ)}, s{sQA} offen offset:{t*2048+j*32}")
dma_stage()
if STAMP:
    I("s_lshl_b32 s44, s2, 3"); I(f"s_add_u32 s44, s44, s{sWave}"); I("s_lshl_b32 s44, s44, 8")
I(f"s_lshl_b32 s{sT1}, s{sHk}, 11")
I("v_lshrrev_b32 v6, 2, v3")
I("v_and_b32 v6, 3, v6")
I("v_xor_b32 v6, v6, v4")
I(f"v_lshl_add_u32 v{vKl0}, v6, 4, v5")
I(f"v_add_u32 v{vKl0}, s{sT1}, v{vKl0}")
I(f"v_xor_b32 v{vKl1}, 32, v{vKl0}")
I("v_and_b32 v6, 15, v2")
I("v_lshrrev_b32 v7, 2, v6")
I("v_lshl_add_u32 v7, v4, 3, v7")
I("v_lshlrev_b32 v7, 6, v7")
I("v_and_b32 v6, 3, v6")
I("v_lshl_add_u32 v7, v6, 3, v7")
I("v_bfe_u32 v6, v2, 4, 1")
I(f"v_lshl_add_u32 v{vVl}, v6, 5, v7")
I(f"v_add_u32 v{vVl}, s{sT1}, v{vVl}")
I(f"v_mov_b32 v{vKa0}, v{vKl0}")
I(f"v_mov_b32 v{vKa1}, v{vKl1}")
I(f"v_mov_b32 v{vVa}, v{vVl}")
I(f"v_mov_b32 v{vIdx}, 0xdddddddd")
I("v_lshlrev_b32 v6, 9, v4")
I(f"v_lshl_add_u32 v{vFV}, v3, 1, v6")
I(f"s_mul_i32 s{sT0}, s{sWave}, 9216")
I(f"v_add_u32 v{vXw}, s{sT0}, v{vDV}")
I(f"s_xor_b32 s{sT0}, s{sWave}, 4")
I(f"s_mul_i32 s{sT0}, s{sT0}, 9216")
I(f"v_add_u32 v{vXr}, s{sT0}, v{vDV}")
I(f"s_lshl_b32 s{sT0}, s{sWave}, 12")
I(f"s_add_u32 s{sT0}, s{sT0}, 98304")
I(f"v_add_u32 v1, s{sT0}, v{vDV}")
I(f"v_xor_b32 v0, 0x4000, v1")
I("v_and_b32 v6, 7, v2")
I("v_cmp_eq_u32 vcc, 0, v6")
I("v_cmp_eq_u32 s[40:41], 4, v6")
I("v_mov_b32 v7, 0x3f803f80")
I(f"s_mov_b32 s{sStage}, 0")
I(f"s_mov_b32 s{sSlot}, 0")
I(f"v_cndmask_b32 v{vOnes}, 0, v7, vcc")
I(f"v_cndmask_b32 v{vOnes+1}, 0, v7, vcc")
I(f"v_cndmask_b32 v{vOnes+2}, 0, v7, s[40:41]")
I(f"v_cndmask_b32 v{vOnes+3}, 0, v7, s[40:41]")
I(f"v_mov_b32 v6, {f32hex(CSCALE)}")
I(f"v_mov_b32 v7, v6")
assert vL[0] == vO[3] + 16
for r in range(vO[0], vL[3] + 4, 2): I(f"v_pk_mov_b32 {R(r,2)}, 0, 0") if False else None
I(f"v_mov_b32 v2, 0")
I(f"v_mov_b32 v3, 0")
for r in range(vO[0], vL[3] + 4, 2): I(f"v_mov_b64 {R(r,2)}, 0")
for i in range(8, 16, 2): I(f"v_mov_b64 {R(vS[3]+i,2)}, 0")
for i in range(4, 8, 2): I(f"v_mov_b64 {R(vV[1]+i,2)}, 0")
def qscale(t):
    for j in range(2):
        T = vS[1] + 8 * j
        for i in range(4):
            r = vQ[t][j] + i
            I(f"v_lshlrev_b32 v{T+2*i}, 16, v{r}")
            I(f"v_and_b32 v{T+2*i+1}, 0xffff0000, v{r}")
        for i in range(4):
            I(f"v_pk_mul_f32 {R(T+2*i,2)}, {R(T+2*i,2)}, v[6:7]")
        for i in range(4):
            I(f"v_cvt_pk_bf16_f32 v{vQ[t][j]+i}, v{T+2*i}, v{T+2*i+1}")
        I(f"ds_write_b128 v1, {R(vQ[t][j],4)} offset:{(2*t+j)*1024}")
pstamp()
I("s_waitcnt vmcnt(6)")
pstamp()
qscale(0)
I("s_waitcnt vmcnt(4)")
qscale(1)
I("s_waitcnt vmcnt(0) lgkmcnt(0)")
pstamp()
I("s_barrier")
pstamp()
for l in kread_list(0, 0) + vread_list(0, 0): I(l)
for t in range(2, 4):
    for j in range(2):
        I(f"ds_read_b128 {R(vQ[t][j],4)}, v0 offset:{(2*(t-2)+j)*1024}")
dma_stage()
I("s_waitcnt lgkmcnt(8)")
mfma(vS[0], vK[0], vQ[0][0], None)
mfma(vS[0], vK[0] + 4, vQ[0][1], vS[0])
pstamp()
if STAMP:
    I("v_mov_b32 v4, s48"); I("v_mov_b32 v5, s50"); I("v_mov_b32 v7, s44")
    I("global_store_dwordx2 v7, v[4:5], s[42:43]"); I("s_add_u32 s44, s44, 8")
    for p in range(52, pst[0], 2):
        I(f"v_mov_b32 v4, s{p}"); I(f"v_mov_b32 v5, s{p+1}"); I("v_mov_b32 v7, s44")
        I("global_store_dwordx2 v7, v[4:5], s[42:43]"); I("s_add_u32 s44, s44, 8")
stamp()
I("s_nop 7")
I("s_nop 3")

out.append(".p2align 6")
Lb("L_loop")
for u in range(16):
    C(f"---- phase {u}")
    t, j, b = u & 3, u >> 2, u & 3
    un = u + 1; tn, jn, bn = un & 3, un >> 2, un & 3
    up = u - 1; tp, jp, bp = up & 3, up >> 2, up & 3
    S = vS[b]
    fill = {}
    def put(k, l): fill.setdefault(k, []).append(l)
    if u == 13:
        I("s_waitcnt vmcnt(0)")
        I("s_barrier")
        I(f"s_add_u32 s{sSlot}, s{sSlot}, 32768")
        I(f"s_and_b32 s{sSlot}, s{sSlot}, 0x1ffff")
        I(f"v_add_u32 v{vKa0}, s{sSlot}, v{vKl0}")
        I(f"v_add_u32 v{vKa1}, s{sSlot}, v{vKl1}")
        I(f"v_add_u32 v{vVa}, s{sSlot}, v{vVl}")
    if u == 14:
        I(f"s_cmp_lt_u32 s{sStage}, 6")
        I("s_cbranch_scc0 L_nodma1")
        for l in dma_k(): I(l)
        Lb("L_nodma1")
    if u == 15:
        I(f"s_cmp_lt_u32 s{sStage}, 6")
        I("s_cbranch_scc0 L_nodma2")
        for l in dma_v(): I(l)
        Lb("L_nodma2")
    if t == 1:
        kl = kread_list((j + 1) & 3, (j + 1) & 1)
        put(0, kl[0]); put(1, kl[1])
    if t == 2:
        vl = vread_list((j + 1) & 3, (j + 1) & 1)
        put(0, vl[0]); put(1, vl[1]); put(3, vl[2]); put(4, vl[3])
    if t == 3: I("s_waitcnt lgkmcnt(4)")
    def E(k):
        vexp(S + k)
        for l in fill.get(k, []): I(l)
    mfma(vS[bn], vK[jn & 1], vQ[tn][0], None)
    E(0); E(1); E(2)
    mfma(vS[bn], vK[jn & 1] + 4, vQ[tn][1], vS[bn])
    E(3); E(4); E(5)
    smf32(vO[tp], vV[jp & 1] + 4, vS[bp] + 8)
    E(6); E(7); E(8)
    smf16(vL[tp], vS[bp] + 8)
    E(9); E(10)
    if t == 0: I("s_waitcnt lgkmcnt(0)")
    smf32(vO[t], vV[j & 1], S)
    E(11); E(12); E(13)
    smf16(vL[t], S)
    E(14); E(15)
stamp()
I(f"s_add_u32 s{sStage}, s{sStage}, 1")
I(f"s_cmp_lt_u32 s{sStage}, 8")
I("s_cbranch_scc1 L_loop")
I("s_nop 1")
smf32(vO[3], vV[1] + 4, vS[3] + 8)
smf16(vL[3], vS[3] + 8)
for c in range(8):
    I(f"ds_write_b128 v{vXw}, {R(vO[0]+4*c,4)} offset:{c*1024}")
I(f"ds_write_b32 v{vXw}, v{vL[0]} offset:8192")
I(f"ds_write_b32 v{vXw}, v{vL[1]} offset:8196")
I("s_waitcnt lgkmcnt(0)")
stamp()
I("s_barrier")
stamp()
I(f"ds_read_b64 {R(vS[2],2)}, v{vXr} offset:8192")
for c in range(8):
    I(f"ds_read_b128 {R(vS[c>>2]+4*(c&3),4)}, v{vXr} offset:{c*1024}")
KO = [vO[2], vO[3]]; KL = [vL[2], vL[3]]; KQ = [vQ[2], vQ[3]]
I("s_waitcnt lgkmcnt(8)")
for t in range(2):
    I(f"v_add_f32 v{KL[t]}, v{KL[t]}, v{vS[2]+t}")
z = vT + 6
I(f"v_maximum3_f32 v{z}, |v{KL[0]}|, |v{KL[1]}|, |v{KL[1]}|")
I(f"v_min_f32 v{vT+3}, v{KL[0]}, v{KL[1]}")
I(f"v_mov_b32 v{vT+7}, 0x7f800000")
for c in range(8):
    I(f"s_waitcnt lgkmcnt({7-c})")
    for i in range(0, 4, 2):
        r = vO[2] + 4 * c + i
        I(f"v_pk_add_f32 {R(r,2)}, {R(r,2)}, {R(vS[c>>2]+4*(c&3)+i,2)}")
    for i in range(0, 4, 2):
        r = vO[2] + 4 * c + i
        I(f"v_maximum3_f32 v{z}, v{z}, |v{r}|, |v{r+1}|")
I(f"v_cmp_lt_f32 vcc, v{z}, v{vT+7}")
I(f"v_cmp_le_f32 s[40:41], 1.0, v{vT+3}")
I("s_nop 1")
I("s_and_b64 vcc, vcc, s[40:41]")
I("s_cmp_eq_u64 vcc, -1")
I("s_cbranch_scc0 L_fallback")
Lb("L_store")
for t in range(2):
    I(f"v_rcp_f32 v{vT+2+2*t}, v{KL[t]}")
I("s_nop 0")
for t in range(2):
    I(f"v_mov_b32 v{vT+3+2*t}, v{vT+2+2*t}")
for t in range(2):
    P = vS[t]
    for i in range(0, 16, 2):
        I(f"v_pk_mul_f32 {R(KO[t]+i,2)}, {R(KO[t]+i,2)}, {R(vT+2+2*t,2)}")
    for i in range(8):
        I(f"v_cvt_pk_bf16_f32 v{P+i}, v{KO[t]+2*i}, v{KO[t]+2*i+1}")
    I("s_nop 1")
    for g in (0, 2):
        I(f"v_permlane32_swap_b32 v{P+2*g}, v{P+2*g+2}")
        I(f"v_permlane32_swap_b32 v{P+2*g+1}, v{P+2*g+3}")
    for g in (0, 2):
        I(f"buffer_store_dwordx4 {R(P+2*g,4)}, v{vQoff}, {SR(sO)}, s{sQB} offen offset:{t*2048+g*16}")
stamp()
if STAMP: I("s_waitcnt vmcnt(0)")
stamp()
Lb("L_end")
I("s_endpgm")

vC = [vO[0], vO[1]]
def crosshalf_to_C(t):
    m = vT + 4 + t
    I(f"v_mov_b32 v{vT+6}, v{m}")
    I("s_nop 1")
    I(f"v_permlane32_swap_b32 v{vT+6}, v{m}")
    I("s_nop 1")
    I(f"v_max_f32 v{m}, v{m}, v{vT+6}")
    for i in range(16):
        I(f"v_sub_f32 v{vC[t]+i}, 0, v{m}")
Lb("L_fallback")
I(f"s_mov_b32 s{sG}, s{sHead}")
I(f"s_mov_b32 s{sStage}, 0")
I(f"v_mov_b32 v{vT+4}, 0xff800000")
I(f"v_mov_b32 v{vT+5}, 0xff800000")
Lb("L_fb1")
for j in range(2):
    I(f"buffer_load_dwordx4 {R(vK[0]+4*j,4)}, v{vQoff}, {SR(sK)}, s{sG} offen offset:{j*32}")
I("s_waitcnt vmcnt(0)")
for t in range(2):
    mfma(vS[t], vK[0], KQ[t][0], None)
    mfma(vS[t], vK[0] + 4, KQ[t][1], vS[t])
I("s_nop 15")
I("s_nop 3")
for t in range(2):
    m = vT + 4 + t
    for k in range(0, 16, 2):
        I(f"v_max3_f32 v{m}, v{m}, v{vS[t]+k}, v{vS[t]+k+1}")
I(f"s_add_u32 s{sG}, s{sG}, 2048")
I(f"s_add_u32 s{sStage}, s{sStage}, 1")
I(f"s_cmp_lt_u32 s{sStage}, 64")
I("s_cbranch_scc1 L_fb1")
crosshalf_to_C(0)
crosshalf_to_C(1)
for t in range(2):
    for i in range(16): I(f"v_mov_b32 v{KO[t]+i}, 0")
    for i in range(4): I(f"v_mov_b32 v{KL[t]+i}, 0")
I(f"s_mov_b32 s{sG}, s{sHead}")
I(f"s_mov_b32 s{sStage}, 0")
Lb("L_fb2")
for j in range(2):
    I(f"buffer_load_dwordx4 {R(vK[0]+4*j,4)}, v{vQoff}, {SR(sK)}, s{sG} offen offset:{j*32}")
for j in range(2):
    for e in range(8):
        I(f"buffer_load_ushort v{vS[2]+8*j+e}, v{vFV}, {SR(sV)}, s{sG} offen offset:{(16*j+e)*64}")
I("s_waitcnt vmcnt(0)")
for i in range(8):
    I(f"v_lshl_or_b32 v{vV[0]+i}, v{vS[2]+2*i+1}, 16, v{vS[2]+2*i}")
for t in range(2):
    mfma(vS[t], vK[0], KQ[t][0], vC[t])
    mfma(vS[t], vK[0] + 4, KQ[t][1], vS[t])
I("s_nop 15")
I("s_nop 3")
for t in range(2):
    for i in range(16): vexp(vS[t] + i)
I("s_nop 3")
for t in range(2):
    smf32(KO[t], vV[0], vS[t])
    smf32(KO[t], vV[0] + 4, vS[t] + 8)
    smf16(KL[t], vS[t])
    smf16(KL[t], vS[t] + 8)
I(f"s_add_u32 s{sG}, s{sG}, 2048")
I(f"s_add_u32 s{sStage}, s{sStage}, 1")
I(f"s_cmp_lt_u32 s{sStage}, 64")
I("s_nop 15")
I("s_cbranch_scc1 L_fb2")
I("s_nop 15")
I("s_branch L_store")

nv = (NVGPR + 3) // 4 * 4
out += ['.section .rodata,"a"', ".p2align 6", f".amdhsa_kernel {NAME}_kernel",
        f"  .amdhsa_next_free_vgpr {nv}", "  .amdhsa_next_free_sgpr 72", f"  .amdhsa_accum_offset {nv}",
        "  .amdhsa_group_segment_fixed_size 0", "  .amdhsa_kernarg_size 48", "  .amdhsa_user_sgpr_count 2",
        "  .amdhsa_user_sgpr_kernarg_segment_ptr 1", "  .amdhsa_system_sgpr_workgroup_id_x 1",
        ".end_amdhsa_kernel", ""]
dst = sys.argv[1] if len(sys.argv) > 1 else f"cdna_kernels/{NAME}.s"
open(dst, "w").write("\n".join(out))
print("wrote", dst, "vgprs", NVGPR)
```

```python
import re

class Stream:
    def __init__(self):
        self.lines = []
        self.lds = []
    def I(self, s): self.lines.append("  " + s)
    def Lb(self, s): self.lines.append(s + ":")
    def C(self, s): self.lines.append("  ; " + s)
    def raw(self, s): self.lines.append(s)
    def DS(self, s, tag):
        self.I(s); self.lds.append(tag)
    def wait_lds(self, tags, extra=""):
        if isinstance(tags, str): tags = [tags]
        idx = [i for i, t in enumerate(self.lds) if t in tags]
        if not idx:
            if extra: self.I(f"s_waitcnt {extra}")
            return
        n = len(self.lds) - 1 - max(idx)
        assert n <= 15
        self.I(f"s_waitcnt {extra + ' ' if extra else ''}lgkmcnt({n})")
        self.lds = self.lds[max(idx) + 1:]
    def wait_all_lds(self, extra=""):
        self.I(f"s_waitcnt {extra + ' ' if extra else ''}lgkmcnt(0)")
        self.lds = []

def regs_of(op):
    op = op.strip().strip('|').lstrip('-').strip('|')
    m = re.fullmatch(r"v\[(\d+):(\d+)\]", op)
    if m: return set(range(int(m.group(1)), int(m.group(2)) + 1))
    m = re.fullmatch(r"v(\d+)", op)
    if m: return {int(m.group(1))}
    return set()

TRANS = ("v_exp_f32", "v_rcp_f32", "v_log_f32", "v_rsq_f32", "v_sqrt_f32")
def parse(line):
    s = line.split(";")[0].strip()
    if not s or s.endswith(":") or s.startswith("."): return None
    parts = s.split(None, 1)
    mn = parts[0]
    ops = [o.strip() for o in parts[1].split(",")] if len(parts) > 1 else []
    ops = [o.split()[0] if o else o for o in ops]
    d = dict(mn=mn, kind="other", w=set(), r=set(), states=1, text=s)
    if mn == "s_nop": d["states"] = int(ops[0]) + 1
    elif mn.startswith("v_mfma") or mn.startswith("v_smfmac"):
        d["kind"] = "mfma"; d["w"] = regs_of(ops[0]); d["a"] = regs_of(ops[1]); d["b"] = regs_of(ops[2])
        if mn.startswith("v_smfmac"):
            d["c"] = regs_of(ops[0]); d["idx"] = regs_of(ops[3])
        else:
            d["c"] = regs_of(ops[3]); d["idx"] = set()
        d["passes"] = 8 if "32x32" in mn else 4
    elif mn.startswith("v_permlane"):
        d["kind"] = "valu"; d["w"] = regs_of(ops[0]) | regs_of(ops[1]); d["r"] = set(d["w"]); d["perm"] = True
    elif mn.startswith("v_cmp"):
        d["kind"] = "valu"; d["r"] = set().union(*[regs_of(o) for o in ops[1:]])
    elif mn.startswith("v_readfirstlane"):
        d["kind"] = "valu"; d["r"] = regs_of(ops[1]); d["rfl"] = True
    elif mn.startswith("v_"):
        d["kind"] = "valu"; d["w"] = regs_of(ops[0]); d["r"] = set().union(*[regs_of(o) for o in ops[1:]]) if len(ops) > 1 else set()
        d["trans"] = mn in TRANS
    elif mn.startswith("ds_read"):
        d["kind"] = "mem"; d["w"] = regs_of(ops[0]); d["r"] = regs_of(ops[1])
    elif mn.startswith("ds_write"):
        d["kind"] = "mem"; d["r"] = regs_of(ops[0]) | regs_of(ops[1])
    elif mn.startswith("buffer_store") or mn.startswith("global_store"):
        d["kind"] = "mem"; d["r"] = regs_of(ops[0]) | regs_of(ops[1]); d["store"] = True
        d["data"] = regs_of(ops[0]) if mn.startswith("buffer") else regs_of(ops[1])
    elif mn.startswith("buffer_load"):
        d["kind"] = "mem"
        if " lds" in s: d["r"] = regs_of(ops[0])
        else: d["w"] = regs_of(ops[0]); d["r"] = regs_of(ops[1])
    elif mn.startswith("global_load"):
        d["kind"] = "mem"; d["w"] = regs_of(ops[0]); d["r"] = regs_of(ops[1])
    return d

def check_hazards(lines, name=""):
    ins = [p for p in (parse(l) for l in lines) if p]
    bad = 0
    for i, c in enumerate(ins):
        dist = 0
        for k in range(i - 1, max(-1, i - 24), -1):
            p = ins[k]
            need = 0; why = ""
            if p["kind"] == "mfma":
                ps = p["passes"]
                rw = {4: 8, 8: 12}[ps]; ov = {4: 6, 8: 10}[ps]; war = {4: 3, 8: 7}[ps]
                if c["kind"] == "mfma":
                    if p["w"] & (c["a"] | c["b"] | c["idx"]): need, why = rw, "XDL D -> A/B"
                    elif p["w"] & c["c"] and not (p["w"] == c["c"] and ps == c["passes"]): need, why = ov, "XDL D -> C overlap"
                elif c["kind"] in ("valu", "mem"):
                    if p["w"] & (c["r"] | c["w"]): need, why = rw, "XDL D -> VALU/mem"
                    elif c["kind"] == "valu" and p["c"] & c["w"]: need, why = war, "XDL C read -> VALU write"
            elif p["kind"] == "valu":
                if c["kind"] == "mfma" and p["w"] & (c["a"] | c["b"] | c["c"] | c["idx"]): need, why = 2, "VALU -> MFMA"
                elif c.get("perm") and p["w"] & c["r"]: need, why = 2, "VALU -> permlane"
                elif c.get("rfl") and p["w"] & c["r"]: need, why = 1, "VALU -> readfirstlane"
                elif p.get("trans") and c["kind"] == "valu" and not c.get("trans") and p["w"] & c["r"]: need, why = 1, "trans -> VALU"
            elif p.get("store") and len(p["data"]) >= 3 and c["kind"] == "valu" and p["data"] & c["w"]: need, why = 2, "store data WAR"
            if need > dist:
                print(f"HAZARD[{name}] {why}: need {need} have {dist}: '{p['text']}' -> '{c['text']}'"); bad += 1
            dist += p["states"]
    return bad
```

```python
import sys, struct, os
sys.path.insert(0, os.path.dirname(os.path.abspath(__file__)))
from asmlib import Stream, check_hazards
STAMP = bool(os.environ.get("STAMP"))
OPT = set(os.environ.get("OPT", "").split(","))
NAME = "standalone__fused_io_aware_attn__prompt"
st = Stream()
I, Lb, C, DS = st.I, st.Lb, st.C, st.DS
def f32hex(x): return "0x%08x" % struct.unpack("<I", struct.pack("<f", x))[0]
CSCALE = (32 ** -0.5) * 1.4426950408889634
STORE_FLAGS = "" if "plainst" in OPT else " nt"

class Alloc:
    def __init__(s, base): s.n = base
    def get(s, k, al=4):
        s.n = (s.n + al - 1) // al * al
        r = s.n; s.n += k; return r
va = Alloc(0)
vT = va.get(8, 1)
vCs = va.get(2, 2)
vQoff = va.get(1, 1); vDK = va.get(1, 1); vDV = va.get(1, 1)
vKl0 = va.get(1, 1); vKl1 = va.get(1, 1); vVl = va.get(1, 1)
vKa0 = va.get(1, 1); vKa1 = va.get(1, 1); vVa = va.get(1, 1)
vIdx = va.get(1, 1); vFV = va.get(1, 1)
vXw = va.get(1, 1); vXr = va.get(1, 1); vHw = va.get(1, 1); vHr = va.get(1, 1); vLw = va.get(1, 1); vLr = va.get(1, 1)
vOnes = va.get(4)
vQ = [[va.get(4) for j in range(2)] for t in range(4)]
vO = [va.get(16) for t in range(4)]
vL = [va.get(4) for t in range(4)]
vS = [va.get(16) for b in range(4)]
vK = [va.get(8) for b in range(2)]
vV = [va.get(8) for b in range(2)]
NVGPR = va.n
assert NVGPR <= 256
def R(b, n): return f"v[{b}:{b+n-1}]"

sQ, sK, sV, sO = 12, 16, 20, 24
sHead, sWave, sQA, sG, sM, sStage, sSlot, sT0, sT1, sQB, sHk = 28, 29, 30, 31, 32, 33, 34, 35, 36, 37, 38
sOK = 40
sTmp = 42
def SR(b): return f"s[{b}:{b+3}]"

def mfma(d, a, b, c):
    cs = "0" if c is None else R(c, 16)
    I(f"v_mfma_f32_32x32x16_bf16 {R(d,16)}, {R(a,4)}, {R(b,4)}, {cs}")
def smf32(d, a, b): I(f"v_smfmac_f32_32x32x32_bf16 {R(d,16)}, {R(a,4)}, {R(b,8)}, v{vIdx}")
def smf16(d, b): I(f"v_smfmac_f32_16x16x64_bf16 {R(d,4)}, {R(vOnes,4)}, {R(b,8)}, v{vIdx}")
def vexp(r): I(f"v_exp_f32 v{r}, v{r}")
def kreads(jl, buf):
    tag = f"K{buf}"
    return [lambda: DS(f"ds_read_b128 {R(vK[buf],4)}, v{vKa0} offset:{jl*4096}", tag),
            lambda: DS(f"ds_read_b128 {R(vK[buf]+4,4)}, v{vKa1} offset:{jl*4096}", tag)]
def vreads(jl, buf):
    tag = f"V{buf}"
    return [(lambda j=j, x=x: DS(f"ds_read_b64_tr_b16 {R(vV[buf]+4*j+2*x,2)}, v{vVa} offset:{16384+jl*4096+j*1024+x*256}", tag)) for j in range(2) for x in range(2)]
def dma_k():
    for l in [f"s_mov_b32 m0, s{sM}", "s_nop 0",
              f"buffer_load_dwordx4 v{vDK}, {SR(sK)}, s{sG} offen lds",
              f"buffer_load_dwordx4 v{vDK}, {SR(sK)}, s{sG} offen offset:1024 lds"]: I(l)
def dma_v():
    for l in [f"s_add_u32 m0, s{sM}, 16384", "s_nop 0",
              f"buffer_load_dwordx4 v{vDV}, {SR(sV)}, s{sG} offen lds",
              f"buffer_load_dwordx4 v{vDV}, {SR(sV)}, s{sG} offen offset:1024 lds",
              f"s_add_u32 s{sG}, s{sG}, 16384", f"s_add_u32 s{sM}, s{sM}, 32768", f"s_and_b32 s{sM}, s{sM}, 0x1ffff"]: I(l)
def next_slot():
    I(f"s_add_u32 s{sSlot}, s{sSlot}, 32768")
    I(f"s_and_b32 s{sSlot}, s{sSlot}, 0x1ffff")
def addr_k():
    I(f"v_add_u32 v{vKa0}, s{sSlot}, v{vKl0}")
    I(f"v_add_u32 v{vKa1}, s{sSlot}, v{vKl1}")
def addr_v():
    I(f"v_add_u32 v{vVa}, s{sSlot}, v{vVl}")
pst = [52]
def stamp():
    if not STAMP: return
    I("s_memtime s[46:47]"); I("s_memrealtime s[48:49]"); st.wait_all_lds()
    I(f"s_mov_b32 s{pst[0]}, s46"); I(f"s_mov_b32 s{pst[0]+1}, s48"); pst[0] += 2

def qscale_ops(t, T, sel):
    ops = []
    for j in range(2):
        for i in range(4):
            r = vQ[t][j] + i
            ops.append(lambda r=r, i=i: I(f"v_lshlrev_b32 v{T+2*i}, 16, v{r}"))
            ops.append(lambda r=r, i=i: I(f"v_and_b32 v{T+2*i+1}, 0xffff0000, v{r}"))
        for i in range(4):
            ops.append(lambda i=i: I(f"v_pk_mul_f32 {R(T+2*i,2)}, {R(T+2*i,2)}, {R(vCs,2)}"))
        for i in range(4):
            ops.append(lambda i=i, j=j: I(f"v_cvt_pk_bf16_f32 v{vQ[t][j]+i}, v{T+2*i}, v{T+2*i+1}"))
        ops.append(lambda j=j: DS(f"ds_write_b128 v{vHw}, {R(vQ[t][j],4)} offset:{sel*2048+j*1024}", "qw"))
    return ops
def qfetch(t, sel):
    for j in range(2):
        DS(f"ds_read_b128 {R(vQ[t][j],4)}, v{vHr} offset:{sel*2048+j*1024}", f"Q{t}")

def send_ops(t, sel):
    ops = [(lambda c=c: DS(f"ds_write_b128 v{vXw}, {R(vO[t]+4*c,4)} offset:{sel*32768+c*1024}", "xw")) for c in range(4)]
    ops.append(lambda: DS(f"ds_write_b32 v{vLw}, v{vL[t]} offset:{sel*2048}", "xw"))
    return ops
def recv_ops(t, sel):
    X = vO[t - 1]
    ops = [lambda: DS(f"ds_read_b32 v{vT+1}, v{vLr} offset:{sel*2048}", "xl")]
    ops += [(lambda c=c: DS(f"ds_read_b128 {R(X+4*c,4)}, v{vXr} offset:{sel*32768+c*1024}", f"x{c}")) for c in range(4)]
    return ops
def final_ops(t, sel):
    X = vO[t - 1]; O = vO[t]; z = vT + 6
    ops = []
    ops.append(lambda: st.wait_lds("xl"))
    ops.append(lambda: I(f"v_add_f32 v{vL[t]}, v{vL[t]}, v{vT+1}"))
    ops.append(lambda: I(f"v_rcp_f32 v{vT+2}, v{vL[t]}"))
    ops.append(lambda: I(f"v_cmp_le_f32 s[{sTmp}:{sTmp+1}], 1.0, v{vL[t]}"))
    ops.append(lambda: I(f"v_mov_b32 v{vT+3}, v{vT+2}"))
    ops.append(lambda: I(f"s_and_b64 s[{sOK}:{sOK+1}], s[{sOK}:{sOK+1}], s[{sTmp}:{sTmp+1}]"))
    for c in range(4):
        ops.append(lambda c=c: st.wait_lds(f"x{c}"))
        for i in (0, 2):
            r = 4 * c + i
            ops.append(lambda r=r: I(f"v_pk_add_f32 {R(O+r,2)}, {R(O+r,2)}, {R(X+r,2)}"))
        for i in (0, 2):
            r = 4 * c + i
            first = f"|v{vL[t]}|" if r == 0 else f"v{z}"
            ops.append(lambda r=r, first=first: I(f"v_maximum3_f32 v{z}, {first}, |v{O+r}|, |v{O+r+1}|"))
    ops.append(lambda: I(f"v_cmp_gt_f32 s[{sTmp}:{sTmp+1}], v{vT+7}, v{z}"))
    ops += norm_store_ops(t, sel)
    ops.append(lambda: I(f"s_and_b64 s[{sOK}:{sOK+1}], s[{sOK}:{sOK+1}], s[{sTmp}:{sTmp+1}]"))
    return ops
def norm_store_ops(t, sel):
    X = vO[t - 1]; O = vO[t]
    ops = []
    for r in range(0, 16, 2):
        ops.append(lambda r=r: I(f"v_pk_mul_f32 {R(O+r,2)}, {R(O+r,2)}, {R(vT+2,2)}"))
    for i in range(8):
        ops.append(lambda i=i: I(f"v_cvt_pk_bf16_f32 v{X+i}, v{O+2*i}, v{O+2*i+1}"))
    ops.append(lambda: I("s_nop 1"))
    for g in (0, 2):
        ops.append(lambda g=g: I(f"v_permlane32_swap_b32 v{X+2*g}, v{X+2*g+2}"))
        ops.append(lambda g=g: I(f"v_permlane32_swap_b32 v{X+2*g+1}, v{X+2*g+3}"))
    for g in (0, 2):
        ops.append(lambda g=g: I(f"buffer_store_dwordx4 {R(X+2*g,4)}, v{vQoff}, {SR(sO)}, s{sQB} offen offset:{g*16}{STORE_FLAGS}" if sel == 0 else
                                 f"buffer_store_dwordx4 {R(X+2*g,4)}, v{vQoff}, {SR(sO)}, s{sT1} offen offset:{g*16}{STORE_FLAGS}"))
    return ops

def unit(kind, u):
    if u < 0: return dict(t=3, j=3, kb=1, vb=1, sb=3)
    if u > 15: return dict(t=0, j=0, kb=0, vb=0, sb=0)
    if kind == "mid": return dict(t=u & 3, j=u >> 2, kb=(u >> 2) & 1, vb=(u >> 2) & 1, sb=u & 3)
    return dict(t=2 * (u >> 3) + (u & 1), j=(u >> 1) & 3, kb=(u >> 1) & 1, vb=(u >> 1) & 1, sb=u & 3)

def phase(kind, u, pre=(), side=None, noqk=False):
    side = side or {}
    p, c, n = unit(kind, u - 1), unit(kind, u), unit(kind, u + 1)
    S = vS[c["sb"]]
    C(f"---- {kind} phase {u}")
    for f in pre: f()
    def E(*ks):
        for k in ks:
            vexp(S + k)
            for f in side.get(k, []): f()
    if not noqk:
        st.wait_lds([f"K{n['kb']}", f"Q{n['t']}"])
        mfma(vS[n["sb"]], vK[n["kb"]], vQ[n["t"]][0], None)
    E(0, 1, 2)
    if not noqk: mfma(vS[n["sb"]], vK[n["kb"]] + 4, vQ[n["t"]][1], vS[n["sb"]])
    E(3, 4, 5)
    smf32(vO[p["t"]], vV[p["vb"]] + 4, vS[p["sb"]] + 8)
    E(6, 7, 8)
    smf16(vL[p["t"]], vS[p["sb"]] + 8)
    E(9, 10)
    st.wait_lds(f"V{c['vb']}")
    smf32(vO[c["t"]], vV[c["vb"]], S)
    E(11, 12, 13)
    smf16(vL[c["t"]], S)
    E(14, 15)
def spread(side, ops, slots):
    n = len(slots); per = -(-len(ops) // n)
    for i, f in enumerate(ops):
        side.setdefault(slots[min(i // per, n - 1)], []).append(f)

hdr = open("cdna_kernels/%s.s.ref" % NAME).read().split("\n")
for l in hdr:
    if l.startswith("; @launch"): st.raw("; @launch grid=(256,1,1) block=(512,1,1) lds=135168")
    elif l.startswith(";"): st.raw(l)
    else: break
for l in ['.amdgcn_target "amdgcn-amd-amdhsa--gfx950"', ".text", f".globl {NAME}_kernel", ".p2align 8",
          f".type {NAME}_kernel,@function", f"{NAME}_kernel:"]: st.raw(l)

I("s_load_dwordx8 s[4:11], s[0:1], 0")
if STAMP:
    I("s_load_dwordx2 s[44:45], s[0:1], 40")
    I("s_memtime s[46:47]"); I("s_memrealtime s[48:49]")
I("s_cmp_ge_u32 s2, 256")
I("s_cbranch_scc1 L_end")
I("v_lshrrev_b32 v1, 6, v0")
I("v_and_b32 v2, 63, v0")
I("s_and_b32 s3, s2, 7")
I(f"s_lshr_b32 s{sT0}, s2, 3")
I(f"v_readfirstlane_b32 s{sWave}, v1")
I("s_lshl_b32 s3, s3, 3")
I(f"s_lshr_b32 s{sT1}, s{sT0}, 2")
I(f"s_add_u32 s3, s3, s{sT1}")
I(f"s_lshl_b32 s{sHead}, s3, 17")
I(f"s_and_b32 s{sT0}, s{sT0}, 3")
I(f"s_lshl_b32 s{sT0}, s{sT0}, 15")
I(f"s_add_u32 s{sT0}, s{sHead}, s{sT0}")
I(f"s_and_b32 s{sT1}, s{sWave}, 3")
I(f"s_lshl_b32 s{sT1}, s{sT1}, 13")
I(f"s_add_u32 s{sT0}, s{sT0}, s{sT1}")
I(f"s_lshr_b32 s{sHk}, s{sWave}, 2")
I(f"s_lshl_b32 s{sT1}, s{sHk}, 11")
I(f"s_add_u32 s{sQA}, s{sT0}, s{sT1}")
I(f"s_xor_b32 s{sT1}, s{sT1}, 2048")
I(f"s_add_u32 s{sQB}, s{sT0}, s{sT1}")
I(f"s_lshl_b32 s{sM}, s{sWave}, 11")
I(f"s_add_u32 s{sG}, s{sHead}, s{sM}")
I("v_and_b32 v3, 31, v2")
I("v_lshrrev_b32 v4, 5, v2")
I("v_lshlrev_b32 v5, 6, v3")
I(f"v_lshl_add_u32 v{vQoff}, v4, 4, v5")
I("v_lshrrev_b32 v6, 4, v2")
I("v_and_b32 v7, 3, v2")
I("v_xor_b32 v6, v6, v7")
I("v_lshrrev_b32 v7, 2, v2")
I("v_lshlrev_b32 v7, 6, v7")
I(f"v_lshl_add_u32 v{vDK}, v6, 4, v7")
I(f"v_lshlrev_b32 v{vDV}, 4, v2")
for sr in (sQ, sK, sV, sO):
    I(f"s_mov_b32 s{sr+2}, 8388608")
    I(f"s_mov_b32 s{sr+3}, 0x00020000")
I("s_waitcnt lgkmcnt(0)")
for sr, p in ((sQ, 4), (sK, 6), (sV, 8), (sO, 10)):
    I(f"s_mov_b32 s{sr}, s{p}")
    I(f"s_and_b32 s{sr+1}, s{p+1}, 0xffff")
if STAMP:
    I(f"s_mov_b32 s{pst[0]}, s46"); I(f"s_mov_b32 s{pst[0]+1}, s48"); pst[0] += 2
for c in range(2):
    I(f"buffer_load_dwordx4 {R(vS[2]+4*c,4)}, v{vDV}, {SR(sQ)}, s{sQA} offen offset:{c*1024}")
dma_k(); dma_v()
I(f"s_lshl_b32 s{sT1}, s{sHk}, 11")
I("v_lshrrev_b32 v6, 2, v3")
I("v_and_b32 v6, 3, v6")
I("v_xor_b32 v6, v6, v4")
I(f"v_lshl_add_u32 v{vKl0}, v6, 4, v5")
I(f"v_add_u32 v{vKl0}, s{sT1}, v{vKl0}")
I(f"v_xor_b32 v{vKl1}, 32, v{vKl0}")
I("v_and_b32 v6, 15, v2")
I("v_lshrrev_b32 v7, 2, v6")
I("v_lshl_add_u32 v7, v4, 3, v7")
I("v_lshlrev_b32 v7, 6, v7")
I("v_and_b32 v6, 3, v6")
I("v_lshl_add_u32 v7, v6, 3, v7")
I("v_bfe_u32 v6, v2, 4, 1")
I(f"v_lshl_add_u32 v{vVl}, v6, 5, v7")
I(f"v_add_u32 v{vVl}, s{sT1}, v{vVl}")
I(f"v_mov_b32 v{vKa0}, v{vKl0}")
I(f"v_mov_b32 v{vKa1}, v{vKl1}")
I(f"v_mov_b32 v{vVa}, v{vVl}")
I(f"v_mov_b32 v{vIdx}, 0xdddddddd")
I("v_lshlrev_b32 v6, 9, v4")
I(f"v_lshl_add_u32 v{vFV}, v3, 1, v6")
I(f"s_lshl_b32 s{sT0}, s{sWave}, 12")
I(f"v_add_u32 v{vXw}, s{sT0}, v{vDV}")
I(f"v_xor_b32 v{vXr}, 0x4000, v{vXw}")
I(f"s_and_b32 s{sT0}, s{sWave}, 3")
I(f"s_lshl_b32 s{sT0}, s{sT0}, 13")
I(f"s_add_u32 s{sT0}, s{sT0}, 0x18000")
I(f"s_add_u32 s{sT1}, s{sT1}, s{sT0}")
I(f"v_add_u32 v{vHw}, s{sT1}, v{vDK}")
I(f"v_add_u32 v{vHr}, s{sT0}, v{vKl0}")
I(f"v_xor_b32 v0, 32, v{vHr}")
I(f"v_xor_b32 v1, 0x800, v{vHr}")
I(f"v_xor_b32 v5, 0x820, v{vHr}")
I(f"s_lshl_b32 s{sT0}, s{sWave}, 8")
I(f"s_add_u32 s{sT0}, s{sT0}, 0x20000")
I(f"v_lshl_add_u32 v{vLw}, v2, 2, s{sT0}")
I(f"v_xor_b32 v{vLr}, 0x400, v{vLw}")
I("v_and_b32 v6, 7, v2")
I("v_cmp_eq_u32 vcc, 0, v6")
I(f"v_cmp_eq_u32 s[{sTmp}:{sTmp+1}], 4, v6")
I("v_mov_b32 v7, 0x3f803f80")
I(f"s_mov_b32 s{sStage}, 1")
I(f"s_mov_b32 s{sSlot}, 0")
I(f"v_cndmask_b32 v{vOnes}, 0, v7, vcc")
I(f"v_cndmask_b32 v{vOnes+1}, 0, v7, vcc")
I(f"v_cndmask_b32 v{vOnes+2}, 0, v7, s[{sTmp}:{sTmp+1}]")
I(f"v_cndmask_b32 v{vOnes+3}, 0, v7, s[{sTmp}:{sTmp+1}]")
I(f"v_mov_b32 v{vCs}, {f32hex(CSCALE)}")
I(f"v_mov_b32 v{vCs+1}, v{vCs}")
I(f"v_mov_b32 v{vT+7}, 0x7f800000")
I(f"s_mov_b64 s[{sOK}:{sOK+1}], -1")
I(f"s_add_u32 s{sT1}, s{sQB}, 4096")
assert vL[0] == vO[3] + 16
for r in range(vO[0], vL[3] + 4, 2): I(f"v_mov_b64 {R(r,2)}, 0")
for i in range(8, 16, 2): I(f"v_mov_b64 {R(vS[3]+i,2)}, 0")
for i in range(4, 8, 2): I(f"v_mov_b64 {R(vV[1]+i,2)}, 0")
def qscale_lin(Q, T, off):
    ops = []
    for i in range(4):
        ops.append(lambda i=i: I(f"v_lshlrev_b32 v{T+2*i}, 16, v{Q+i}"))
        ops.append(lambda i=i: I(f"v_and_b32 v{T+2*i+1}, 0xffff0000, v{Q+i}"))
    for i in range(4):
        ops.append(lambda i=i: I(f"v_pk_mul_f32 {R(T+2*i,2)}, {R(T+2*i,2)}, {R(vCs,2)}"))
    for i in range(4):
        ops.append(lambda i=i: I(f"v_cvt_pk_bf16_f32 v{Q+i}, v{T+2*i}, v{T+2*i+1}"))
    ops.append(lambda: DS(f"ds_write_b128 v{vHw}, {R(Q,4)} offset:{off}", "qw"))
    return ops
qa = [[vHr, 0], [1, 5]]
def qfrag(t):
    for j in range(2):
        DS(f"ds_read_b128 {R(vQ[t][j],4)}, v{qa[t&1][j]} offset:{(t>>1)*4096}", f"Q{t}")
if "noearly" not in OPT:
    I("s_barrier")
I(f"s_add_u32 s{sT0}, s{sQA}, 4096")
for c in range(2):
    I(f"buffer_load_dwordx4 {R(vQ[2][c],4)}, v{vDV}, {SR(sQ)}, s{sT0} offen offset:{c*1024}")
stamp()
for c in range(2):
    I(f"s_waitcnt vmcnt({7-c})")
    if c == 0: stamp()
    for f in qscale_lin(vS[2] + 4 * c, vS[1] + 8 * c, c * 1024): f()
st.wait_all_lds("vmcnt(2)")
stamp()
I("s_barrier")
stamp()
for f in kreads(0, 0): f()
qfrag(0); qfrag(1)
for f in vreads(0, 0) + kreads(1, 1): f()
st.wait_lds(["K0", "Q0"])
mfma(vS[0], vK[0], vQ[0][0], None)
mfma(vS[0], vK[0] + 4, vQ[0][1], vS[0])
I("s_nop 7")
I("s_nop 2")
stamp()

def pm_loads(u, side, last):
    if u & 1 == 0: return
    p = u >> 1
    if p + 1 <= 7 or not last: spread(side, vreads((p + 1) & 3, (p + 1) & 1), [0, 1, 3, 4])
    if p + 2 <= 7 or not last: spread(side, kreads((p + 2) & 3, p & 1), [6, 7])
assert vQ[3][1] == vQ[3][0] + 4
for u in range(16):
    side = {}; pre = []
    pm_loads(u, side, False)
    if u == 4:
        pre.append(lambda: I("s_waitcnt vmcnt(0)"))
        spread(side, qscale_lin(vQ[2][0], vQ[3][0], 4096) + qscale_lin(vQ[2][1], vQ[3][0], 5120), list(range(0, 16)))
    if u == 6:
        pre += [lambda: st.wait_lds("qw"), lambda: I("s_barrier"), lambda: qfrag(2), lambda: qfrag(3), dma_k]
    if u == 7: pre.append(dma_v)
    if u == 13: pre += [lambda: I("s_waitcnt vmcnt(0)"), lambda: I("s_barrier"), next_slot, addr_k]
    if u == 14: pre.append(dma_k)
    if u == 15: pre += [addr_v, dma_v]
    phase("first", u, pre, side)
stamp()
entry_state = list(st.lds)

st.raw(".p2align 6")
Lb("L_loop")
loop_start = len(st.lines)
for u in range(16):
    side = {}; pre = []
    t, j = u & 3, u >> 2
    if u == 11:
        pre += [lambda: I("s_waitcnt vmcnt(0)"), lambda: I("s_barrier"), next_slot, addr_k, addr_v]
    if u == 12:
        pre += [lambda: I(f"s_cmp_lt_u32 s{sStage}, 6"), lambda: I("s_cbranch_scc0 L_nodma1"), dma_k, lambda: Lb("L_nodma1")]
    if u == 13:
        pre += [lambda: I(f"s_cmp_lt_u32 s{sStage}, 6"), lambda: I("s_cbranch_scc0 L_nodma2"), dma_v, lambda: Lb("L_nodma2")]
    if t == 3: spread(side, kreads((j + 2) & 3, j & 1), [0, 1])
    if t == 2: spread(side, vreads((j + 1) & 3, (j + 1) & 1), [0, 1, 3, 4])
    phase("mid", u, pre, side)
if STAMP:
    I("s_memtime s[46:47]"); I("s_memrealtime s[48:49]"); st.wait_all_lds()
    I(f"s_lshl_b32 m0, s{sStage}, 1"); I("s_nop 0")
    I("s_movreld_b32 s78, s46"); I("s_movreld_b32 s79, s48")
assert st.lds == entry_state, (st.lds, entry_state)
I(f"s_add_u32 s{sStage}, s{sStage}, 1")
I(f"s_cmp_lt_u32 s{sStage}, 7")
I("s_cbranch_scc1 L_loop")
loop_end = len(st.lines)

fin1 = final_ops(1, 0)
for u in range(16):
    side = {}; pre = []
    pm_loads(u, side, True)
    if u == 8: spread(side, send_ops(0, 0), [2, 3, 4, 5, 6])
    if u == 10:
        pre += [lambda: st.wait_lds("xw"), lambda: I("s_barrier")]
        spread(side, recv_ops(1, 0), [0, 1, 2, 3, 4])
    if u == 11: spread(side, fin1[:24], list(range(2, 16)))
    if u == 12: spread(side, fin1[24:], list(range(0, 16)))
    if u == 15: spread(side, send_ops(2, 1), [15])
    phase("last", u, pre, side, noqk=(u == 15))
stamp()
smf32(vO[3], vV[1] + 4, vS[3] + 8)
smf16(vL[3], vS[3] + 8)
st.wait_lds("xw")
I("s_barrier")
stamp()
for f in recv_ops(3, 1): f()
I("s_nop 3")
for f in final_ops(3, 1): f()
I(f"s_cmp_eq_u64 s[{sOK}:{sOK+1}], -1")
I("s_cbranch_scc0 L_fallback")
Lb("L_done")
if STAMP:
    stamp()
    I("s_waitcnt vmcnt(0)")
    stamp()
    I("s_lshl_b32 s50, s2, 3"); I(f"s_add_u32 s50, s50, s{sWave}"); I("s_lshl_b32 s50, s50, 8")
    order = list(range(52, 52 + 14, 2)) + list(range(80, 92, 2)) + list(range(52 + 14, pst[0], 2))
    for k, p in enumerate(order):
        I(f"v_mov_b32 v4, s{p}"); I(f"v_mov_b32 v5, s{p+1}"); I("v_mov_b32 v6, s50")
        I(f"global_store_dwordx2 v6, v[4:5], s[44:45] offset:{8*k}")
    print("stamps:", len(order))
Lb("L_end")
I("s_endpgm")
main_end = len(st.lines)

KT = [1, 3]
vC = [vS[2], vS[3]]
def crosshalf_to_C(t):
    m = vT + 4 + t
    I(f"v_mov_b32 v{vT+6}, v{m}")
    I("s_nop 1")
    I(f"v_permlane32_swap_b32 v{vT+6}, v{m}")
    I("s_nop 1")
    I(f"v_max_f32 v{m}, v{m}, v{vT+6}")
    for i in range(16):
        I(f"v_sub_f32 v{vC[t]+i}, 0, v{m}")
Lb("L_fallback")
I(f"s_mov_b32 s{sG}, s{sHead}")
I(f"s_mov_b32 s{sStage}, 0")
I(f"v_mov_b32 v{vT+4}, 0xff800000")
I(f"v_mov_b32 v{vT+5}, 0xff800000")
Lb("L_fb1")
for j in range(2):
    I(f"buffer_load_dwordx4 {R(vK[0]+4*j,4)}, v{vQoff}, {SR(sK)}, s{sG} offen offset:{j*32}")
I("s_waitcnt vmcnt(0)")
for t in range(2):
    mfma(vS[t], vK[0], vQ[KT[t]][0], None)
    mfma(vS[t], vK[0] + 4, vQ[KT[t]][1], vS[t])
I("s_nop 15")
I("s_nop 3")
for t in range(2):
    m = vT + 4 + t
    for k in range(0, 16, 2):
        I(f"v_max3_f32 v{m}, v{m}, v{vS[t]+k}, v{vS[t]+k+1}")
I(f"s_add_u32 s{sG}, s{sG}, 2048")
I(f"s_add_u32 s{sStage}, s{sStage}, 1")
I(f"s_cmp_lt_u32 s{sStage}, 64")
I("s_cbranch_scc1 L_fb1")
crosshalf_to_C(0)
crosshalf_to_C(1)
for t in KT:
    for i in range(16): I(f"v_mov_b32 v{vO[t]+i}, 0")
    for i in range(4): I(f"v_mov_b32 v{vL[t]+i}, 0")
I(f"s_mov_b32 s{sG}, s{sHead}")
I(f"s_mov_b32 s{sStage}, 0")
Lb("L_fb2")
for j in range(2):
    I(f"buffer_load_dwordx4 {R(vK[0]+4*j,4)}, v{vQoff}, {SR(sK)}, s{sG} offen offset:{j*32}")
for j in range(2):
    for e in range(8):
        I(f"buffer_load_ushort v{vO[0]+8*j+e}, v{vFV}, {SR(sV)}, s{sG} offen offset:{(16*j+e)*64}")
I("s_waitcnt vmcnt(0)")
for i in range(8):
    I(f"v_lshl_or_b32 v{vV[0]+i}, v{vO[0]+2*i+1}, 16, v{vO[0]+2*i}")
for t in range(2):
    mfma(vS[t], vK[0], vQ[KT[t]][0], vC[t])
    mfma(vS[t], vK[0] + 4, vQ[KT[t]][1], vS[t])
I("s_nop 15")
I("s_nop 3")
for t in range(2):
    for i in range(16): vexp(vS[t] + i)
I("s_nop 3")
for t in range(2):
    smf32(vO[KT[t]], vV[0], vS[t])
    smf32(vO[KT[t]], vV[0] + 4, vS[t] + 8)
    smf16(vL[KT[t]], vS[t])
    smf16(vL[KT[t]], vS[t] + 8)
I(f"s_add_u32 s{sG}, s{sG}, 2048")
I(f"s_add_u32 s{sStage}, s{sStage}, 1")
I(f"s_cmp_lt_u32 s{sStage}, 64")
I("s_nop 15")
I("s_cbranch_scc1 L_fb2")
I("s_nop 15")
for sel, t in enumerate(KT):
    I(f"v_rcp_f32 v{vT+2}, v{vL[t]}")
    I("s_nop 0")
    I(f"v_mov_b32 v{vT+3}, v{vT+2}")
    for f in norm_store_ops(t, sel): f()
    I("s_nop 1")
I("s_branch L_done")

nv = (NVGPR + 3) // 4 * 4
for l in ['.section .rodata,"a"', ".p2align 6", f".amdhsa_kernel {NAME}_kernel",
          f"  .amdhsa_next_free_vgpr {nv}", f"  .amdhsa_next_free_sgpr {100 if STAMP else 48}", f"  .amdhsa_accum_offset {nv}",
          "  .amdhsa_group_segment_fixed_size 0", "  .amdhsa_kernarg_size 48", "  .amdhsa_user_sgpr_count 2",
          "  .amdhsa_user_sgpr_kernarg_segment_ptr 1", "  .amdhsa_system_sgpr_workgroup_id_x 1",
          ".end_amdhsa_kernel", ""]: st.raw(l)
L = st.lines
bad = check_hazards(L, "linear") + check_hazards(L[loop_start:loop_end] * 2, "loop wrap")
assert bad == 0
dst = sys.argv[1] if len(sys.argv) > 1 else f"cdna_kernels/{NAME}.s"
open(dst, "w").write("\n".join(L))
print("wrote", dst, "vgprs", NVGPR)
```

```python
import sys, struct, os
sys.path.insert(0, os.path.dirname(os.path.abspath(__file__)))
from asmlib import Stream, check_hazards
STAMP = bool(os.environ.get("STAMP"))
OPT = set(os.environ.get("OPT", "").split(","))
NAME = "standalone__fused_io_aware_attn__prompt"
st = Stream()
I, Lb, C, DS = st.I, st.Lb, st.C, st.DS
def f32hex(x): return "0x%08x" % struct.unpack("<I", struct.pack("<f", x))[0]
CSCALE = (32 ** -0.5) * 1.4426950408889634
STORE_FLAGS = "" if "plainst" in OPT else " nt"

class Alloc:
    def __init__(s, base): s.n = base
    def get(s, k, al=4):
        s.n = (s.n + al - 1) // al * al
        r = s.n; s.n += k; return r
va = Alloc(0)
vT = va.get(8, 1)
vCs = va.get(2, 2)
vQoff = va.get(1, 1); vDK = va.get(1, 1); vDV = va.get(1, 1)
vKl0 = va.get(1, 1); vKl1 = va.get(1, 1); vVl = va.get(1, 1)
vKa0 = va.get(1, 1); vKa1 = va.get(1, 1); vVa = va.get(1, 1)
vIdx = va.get(1, 1); vFV = va.get(1, 1)
vXw = va.get(1, 1); vXr = va.get(1, 1); vHw = va.get(1, 1); vHr = va.get(1, 1); vLw = va.get(1, 1); vLr = va.get(1, 1)
vOnes = va.get(4)
vQ = [[va.get(4) for j in range(2)] for t in range(4)]
vO = [va.get(16) for t in range(4)]
vL = [va.get(4) for t in range(4)]
vS = [va.get(16) for b in range(4)]
vK = [va.get(8) for b in range(2)]
vV = [va.get(8) for b in range(2)]
NVGPR = va.n
assert NVGPR <= 256
def R(b, n): return f"v[{b}:{b+n-1}]"

sQ, sK, sV, sO = 12, 16, 20, 24
sHead, sWave, sQA, sG, sM, sStage, sSlot, sT0, sT1, sQB, sHk = 28, 29, 30, 31, 32, 33, 34, 35, 36, 37, 38
sOK = 40
sTmp = 42
def SR(b): return f"s[{b}:{b+3}]"

def mfma(d, a, b, c):
    cs = "0" if c is None else R(c, 16)
    I(f"v_mfma_f32_32x32x16_bf16 {R(d,16)}, {R(a,4)}, {R(b,4)}, {cs}")
def smf32(d, a, b): I(f"v_smfmac_f32_32x32x32_bf16 {R(d,16)}, {R(a,4)}, {R(b,8)}, v{vIdx}")
def smf16(d, b): I(f"v_smfmac_f32_16x16x64_bf16 {R(d,4)}, {R(vOnes,4)}, {R(b,8)}, v{vIdx}")
def vexp(r): I(f"v_exp_f32 v{r}, v{r}")
def kreads(jl, buf):
    tag = f"K{buf}"
    return [lambda: DS(f"ds_read_b128 {R(vK[buf],4)}, v{vKa0} offset:{jl*4096}", tag),
            lambda: DS(f"ds_read_b128 {R(vK[buf]+4,4)}, v{vKa1} offset:{jl*4096}", tag)]
def vreads(jl, buf):
    tag = f"V{buf}"
    return [(lambda j=j, x=x: DS(f"ds_read_b64_tr_b16 {R(vV[buf]+4*j+2*x,2)}, v{vVa} offset:{16384+jl*4096+j*1024+x*256}", tag)) for j in range(2) for x in range(2)]
def dma_k():
    for l in [f"s_mov_b32 m0, s{sM}", "s_nop 0",
              f"buffer_load_dwordx4 v{vDK}, {SR(sK)}, s{sG} offen lds",
              f"buffer_load_dwordx4 v{vDK}, {SR(sK)}, s{sG} offen offset:1024 lds"]: I(l)
def dma_v():
    for l in [f"s_add_u32 m0, s{sM}, 16384", "s_nop 0",
              f"buffer_load_dwordx4 v{vDV}, {SR(sV)}, s{sG} offen lds",
              f"buffer_load_dwordx4 v{vDV}, {SR(sV)}, s{sG} offen offset:1024 lds",
              f"s_add_u32 s{sG}, s{sG}, 16384", f"s_add_u32 s{sM}, s{sM}, 32768", f"s_and_b32 s{sM}, s{sM}, 0x1ffff"]: I(l)
def next_slot():
    I(f"s_add_u32 s{sSlot}, s{sSlot}, 32768")
    I(f"s_and_b32 s{sSlot}, s{sSlot}, 0x1ffff")
def addr_k():
    I(f"v_add_u32 v{vKa0}, s{sSlot}, v{vKl0}")
    I(f"v_add_u32 v{vKa1}, s{sSlot}, v{vKl1}")
def addr_v():
    I(f"v_add_u32 v{vVa}, s{sSlot}, v{vVl}")
pst = [52]
def stamp():
    if not STAMP: return
    I("s_memtime s[46:47]"); I("s_memrealtime s[48:49]"); st.wait_all_lds()
    I(f"s_mov_b32 s{pst[0]}, s46"); I(f"s_mov_b32 s{pst[0]+1}, s48"); pst[0] += 2

def qscale_ops(t, T, sel):
    ops = []
    for j in range(2):
        for i in range(4):
            r = vQ[t][j] + i
            ops.append(lambda r=r, i=i: I(f"v_lshlrev_b32 v{T+2*i}, 16, v{r}"))
            ops.append(lambda r=r, i=i: I(f"v_and_b32 v{T+2*i+1}, 0xffff0000, v{r}"))
        for i in range(4):
            ops.append(lambda i=i: I(f"v_pk_mul_f32 {R(T+2*i,2)}, {R(T+2*i,2)}, {R(vCs,2)}"))
        for i in range(4):
            ops.append(lambda i=i, j=j: I(f"v_cvt_pk_bf16_f32 v{vQ[t][j]+i}, v{T+2*i}, v{T+2*i+1}"))
        ops.append(lambda j=j: DS(f"ds_write_b128 v{vHw}, {R(vQ[t][j],4)} offset:{sel*2048+j*1024}", "qw"))
    return ops
def qfetch(t, sel):
    for j in range(2):
        DS(f"ds_read_b128 {R(vQ[t][j],4)}, v{vHr} offset:{sel*2048+j*1024}", f"Q{t}")

def send_ops(t, sel):
    ops = [(lambda c=c: DS(f"ds_write_b128 v{vXw}, {R(vO[t]+4*c,4)} offset:{sel*32768+c*1024}", "xw")) for c in range(4)]
    ops.append(lambda: DS(f"ds_write_b32 v{vLw}, v{vL[t]} offset:{sel*2048}", "xw"))
    return ops
def recv_ops(t, sel):
    X = vO[t - 1]
    ops = [lambda: DS(f"ds_read_b32 v{vT+1}, v{vLr} offset:{sel*2048}", "xl")]
    ops += [(lambda c=c: DS(f"ds_read_b128 {R(X+4*c,4)}, v{vXr} offset:{sel*32768+c*1024}", f"x{c}")) for c in range(4)]
    return ops
def final_ops(t, sel):
    X = vO[t - 1]; O = vO[t]; z = vT + 6
    ops = []
    ops.append(lambda: st.wait_lds("xl"))
    ops.append(lambda: I(f"v_add_f32 v{vL[t]}, v{vL[t]}, v{vT+1}"))
    ops.append(lambda: I(f"v_rcp_f32 v{vT+2}, v{vL[t]}"))
    ops.append(lambda: I(f"v_cmp_le_f32 s[{sTmp}:{sTmp+1}], 1.0, v{vL[t]}"))
    ops.append(lambda: I(f"v_mov_b32 v{vT+3}, v{vT+2}"))
    ops.append(lambda: I(f"s_and_b64 s[{sOK}:{sOK+1}], s[{sOK}:{sOK+1}], s[{sTmp}:{sTmp+1}]"))
    for c in range(4):
        ops.append(lambda c=c: st.wait_lds(f"x{c}"))
        for i in (0, 2):
            r = 4 * c + i
            ops.append(lambda r=r: I(f"v_pk_add_f32 {R(O+r,2)}, {R(O+r,2)}, {R(X+r,2)}"))
        for i in (0, 2):
            r = 4 * c + i
            first = f"|v{vL[t]}|" if r == 0 else f"v{z}"
            ops.append(lambda r=r, first=first: I(f"v_maximum3_f32 v{z}, {first}, |v{O+r}|, |v{O+r+1}|"))
    ops.append(lambda: I(f"v_cmp_gt_f32 s[{sTmp}:{sTmp+1}], v{vT+7}, v{z}"))
    ops += norm_store_ops(t, sel)
    ops.append(lambda: I(f"s_and_b64 s[{sOK}:{sOK+1}], s[{sOK}:{sOK+1}], s[{sTmp}:{sTmp+1}]"))
    return ops
def norm_store_ops(t, sel):
    X = vO[t - 1]; O = vO[t]
    ops = []
    for r in range(0, 16, 2):
        ops.append(lambda r=r: I(f"v_pk_mul_f32 {R(O+r,2)}, {R(O+r,2)}, {R(vT+2,2)}"))
    for i in range(8):
        ops.append(lambda i=i: I(f"v_cvt_pk_bf16_f32 v{X+i}, v{O+2*i}, v{O+2*i+1}"))
    ops.append(lambda: I("s_nop 1"))
    for g in (0, 2):
        ops.append(lambda g=g: I(f"v_permlane32_swap_b32 v{X+2*g}, v{X+2*g+2}"))
        ops.append(lambda g=g: I(f"v_permlane32_swap_b32 v{X+2*g+1}, v{X+2*g+3}"))
    for g in (0, 2):
        ops.append(lambda g=g: I(f"buffer_store_dwordx4 {R(X+2*g,4)}, v{vQoff}, {SR(sO)}, s{sQB} offen offset:{g*16}{STORE_FLAGS}" if sel == 0 else
                                 f"buffer_store_dwordx4 {R(X+2*g,4)}, v{vQoff}, {SR(sO)}, s{sT1} offen offset:{g*16}{STORE_FLAGS}"))
    return ops

def unit(kind, u):
    if u < 0: return dict(t=3, j=3, kb=1, vb=1, sb=3)
    if u > 15: return dict(t=0, j=0, kb=0, vb=0, sb=0)
    if kind == "mid": return dict(t=u & 3, j=u >> 2, kb=(u >> 2) & 1, vb=(u >> 2) & 1, sb=u & 3)
    return dict(t=2 * (u >> 3) + (u & 1), j=(u >> 1) & 3, kb=(u >> 1) & 1, vb=(u >> 1) & 1, sb=u & 3)

def phase(kind, u, pre=(), side=None, noqk=False):
    side = side or {}
    p, c, n = unit(kind, u - 1), unit(kind, u), unit(kind, u + 1)
    S = vS[c["sb"]]
    C(f"---- {kind} phase {u}")
    for f in pre: f()
    def E(*ks):
        for k in ks:
            vexp(S + k)
            for f in side.get(k, []): f()
    if not noqk:
        st.wait_lds([f"K{n['kb']}", f"Q{n['t']}"])
        mfma(vS[n["sb"]], vK[n["kb"]], vQ[n["t"]][0], None)
    E(0, 1, 2)
    if not noqk: mfma(vS[n["sb"]], vK[n["kb"]] + 4, vQ[n["t"]][1], vS[n["sb"]])
    E(3, 4, 5)
    smf32(vO[p["t"]], vV[p["vb"]] + 4, vS[p["sb"]] + 8)
    E(6, 7, 8)
    smf16(vL[p["t"]], vS[p["sb"]] + 8)
    E(9, 10)
    st.wait_lds(f"V{c['vb']}")
    smf32(vO[c["t"]], vV[c["vb"]], S)
    E(11, 12, 13)
    smf16(vL[c["t"]], S)
    E(14, 15)
def spread(side, ops, slots):
    n = len(slots); per = -(-len(ops) // n)
    for i, f in enumerate(ops):
        side.setdefault(slots[min(i // per, n - 1)], []).append(f)

hdr = open("cdna_kernels/%s.s.ref" % NAME).read().split("\n")
for l in hdr:
    if l.startswith("; @launch"): st.raw("; @launch grid=(256,1,1) block=(512,1,1) lds=135168")
    elif l.startswith(";"): st.raw(l)
    else: break
for l in ['.amdgcn_target "amdgcn-amd-amdhsa--gfx950"', ".text", f".globl {NAME}_kernel", ".p2align 8",
          f".type {NAME}_kernel,@function", f"{NAME}_kernel:"]: st.raw(l)

I("s_load_dwordx8 s[4:11], s[0:1], 0")
if STAMP:
    I("s_load_dwordx2 s[44:45], s[0:1], 40")
    I("s_memtime s[46:47]"); I("s_memrealtime s[48:49]")
if "dbg" in OPT:
    I("s_load_dwordx2 s[44:45], s[0:1], 32")
    I("s_memtime s[46:47]"); I("s_memrealtime s[48:49]")
I("s_cmp_ge_u32 s2, 256")
I("s_cbranch_scc1 L_end")
I("v_lshrrev_b32 v1, 6, v0")
I("v_and_b32 v2, 63, v0")
I("s_and_b32 s3, s2, 7")
I(f"s_lshr_b32 s{sT0}, s2, 3")
I(f"v_readfirstlane_b32 s{sWave}, v1")
I("s_lshl_b32 s3, s3, 3")
I(f"s_lshr_b32 s{sT1}, s{sT0}, 2")
I(f"s_add_u32 s3, s3, s{sT1}")
I(f"s_lshl_b32 s{sHead}, s3, 17")
I(f"s_and_b32 s{sT0}, s{sT0}, 3")
I(f"s_lshl_b32 s{sT0}, s{sT0}, 15")
I(f"s_add_u32 s{sT0}, s{sHead}, s{sT0}")
I(f"s_and_b32 s{sT1}, s{sWave}, 3")
I(f"s_lshl_b32 s{sT1}, s{sT1}, 13")
I(f"s_add_u32 s{sT0}, s{sT0}, s{sT1}")
I(f"s_lshr_b32 s{sHk}, s{sWave}, 2")
I(f"s_lshl_b32 s{sT1}, s{sHk}, 11")
I(f"s_add_u32 s{sQA}, s{sT0}, s{sT1}")
I(f"s_xor_b32 s{sT1}, s{sT1}, 2048")
I(f"s_add_u32 s{sQB}, s{sT0}, s{sT1}")
I(f"s_lshl_b32 s{sM}, s{sWave}, 11")
I(f"s_add_u32 s{sG}, s{sHead}, s{sM}")
I("v_and_b32 v3, 31, v2")
I("v_lshrrev_b32 v4, 5, v2")
I("v_lshlrev_b32 v5, 6, v3")
I(f"v_lshl_add_u32 v{vQoff}, v4, 4, v5")
I("v_lshrrev_b32 v6, 4, v2")
I("v_and_b32 v7, 3, v2")
I("v_xor_b32 v6, v6, v7")
I("v_lshrrev_b32 v7, 2, v2")
I("v_lshlrev_b32 v7, 6, v7")
I(f"v_lshl_add_u32 v{vDK}, v6, 4, v7")
I(f"v_lshlrev_b32 v{vDV}, 4, v2")
for sr in (sQ, sK, sV, sO):
    I(f"s_mov_b32 s{sr+2}, 8388608")
    I(f"s_mov_b32 s{sr+3}, 0x00020000")
I("s_waitcnt lgkmcnt(0)")
for sr, p in ((sQ, 4), (sK, 6), (sV, 8), (sO, 10)):
    I(f"s_mov_b32 s{sr}, s{p}")
    I(f"s_and_b32 s{sr+1}, s{p+1}, 0xffff")
if STAMP:
    I(f"s_mov_b32 s{pst[0]}, s46"); I(f"s_mov_b32 s{pst[0]+1}, s48"); pst[0] += 2
for c in range(2):
    I(f"buffer_load_dwordx4 {R(vS[2]+4*c,4)}, v{vDV}, {SR(sQ)}, s{sQA} offen offset:{c*1024}")
dma_k(); dma_v()
I(f"s_lshl_b32 s{sT1}, s{sHk}, 11")
I("v_lshrrev_b32 v6, 2, v3")
I("v_and_b32 v6, 3, v6")
I("v_xor_b32 v6, v6, v4")
I(f"v_lshl_add_u32 v{vKl0}, v6, 4, v5")
I(f"v_add_u32 v{vKl0}, s{sT1}, v{vKl0}")
I(f"v_xor_b32 v{vKl1}, 32, v{vKl0}")
I("v_and_b32 v6, 15, v2")
I("v_lshrrev_b32 v7, 2, v6")
I("v_lshl_add_u32 v7, v4, 3, v7")
I("v_lshlrev_b32 v7, 6, v7")
I("v_and_b32 v6, 3, v6")
I("v_lshl_add_u32 v7, v6, 3, v7")
I("v_bfe_u32 v6, v2, 4, 1")
I(f"v_lshl_add_u32 v{vVl}, v6, 5, v7")
I(f"v_add_u32 v{vVl}, s{sT1}, v{vVl}")
I(f"v_mov_b32 v{vKa0}, v{vKl0}")
I(f"v_mov_b32 v{vKa1}, v{vKl1}")
I(f"v_mov_b32 v{vVa}, v{vVl}")
I(f"v_mov_b32 v{vIdx}, 0xdddddddd")
I("v_lshlrev_b32 v6, 9, v4")
I(f"v_lshl_add_u32 v{vFV}, v3, 1, v6")
I(f"s_lshl_b32 s{sT0}, s{sWave}, 12")
I(f"v_add_u32 v{vXw}, s{sT0}, v{vDV}")
I(f"v_xor_b32 v{vXr}, 0x4000, v{vXw}")
I(f"s_and_b32 s{sT0}, s{sWave}, 3")
I(f"s_lshl_b32 s{sT0}, s{sT0}, 13")
I(f"s_add_u32 s{sT0}, s{sT0}, 0x18000")
I(f"s_add_u32 s{sT1}, s{sT1}, s{sT0}")
I(f"v_add_u32 v{vHw}, s{sT1}, v{vDK}")
I(f"v_add_u32 v{vHr}, s{sT0}, v{vKl0}")
I(f"v_xor_b32 v0, 32, v{vHr}")
I(f"v_xor_b32 v1, 0x800, v{vHr}")
I(f"v_xor_b32 v5, 0x820, v{vHr}")
I(f"s_lshl_b32 s{sT0}, s{sWave}, 8")
I(f"s_add_u32 s{sT0}, s{sT0}, 0x20000")
I(f"v_lshl_add_u32 v{vLw}, v2, 2, s{sT0}")
I(f"v_xor_b32 v{vLr}, 0x400, v{vLw}")
I("v_and_b32 v6, 7, v2")
I("v_cmp_eq_u32 vcc, 0, v6")
I(f"v_cmp_eq_u32 s[{sTmp}:{sTmp+1}], 4, v6")
I("v_mov_b32 v7, 0x3f803f80")
I(f"s_mov_b32 s{sStage}, 1")
I(f"s_mov_b32 s{sSlot}, 0")
I(f"v_cndmask_b32 v{vOnes}, 0, v7, vcc")
I(f"v_cndmask_b32 v{vOnes+1}, 0, v7, vcc")
I(f"v_cndmask_b32 v{vOnes+2}, 0, v7, s[{sTmp}:{sTmp+1}]")
I(f"v_cndmask_b32 v{vOnes+3}, 0, v7, s[{sTmp}:{sTmp+1}]")
I(f"v_mov_b32 v{vCs}, {f32hex(CSCALE)}")
I(f"v_mov_b32 v{vCs+1}, v{vCs}")
I(f"v_mov_b32 v{vT+7}, 0x7f800000")
I(f"s_mov_b64 s[{sOK}:{sOK+1}], -1")
I(f"s_add_u32 s{sT1}, s{sQB}, 4096")
assert vL[0] == vO[3] + 16
for r in range(vO[0], vL[3] + 4, 2): I(f"v_mov_b64 {R(r,2)}, 0")
for i in range(8, 16, 2): I(f"v_mov_b64 {R(vS[3]+i,2)}, 0")
for i in range(4, 8, 2): I(f"v_mov_b64 {R(vV[1]+i,2)}, 0")
def qscale_lin(Q, T, off):
    ops = []
    for i in range(4):
        ops.append(lambda i=i: I(f"v_lshlrev_b32 v{T+2*i}, 16, v{Q+i}"))
        ops.append(lambda i=i: I(f"v_and_b32 v{T+2*i+1}, 0xffff0000, v{Q+i}"))
    for i in range(4):
        ops.append(lambda i=i: I(f"v_pk_mul_f32 {R(T+2*i,2)}, {R(T+2*i,2)}, {R(vCs,2)}"))
    for i in range(4):
        ops.append(lambda i=i: I(f"v_cvt_pk_bf16_f32 v{Q+i}, v{T+2*i}, v{T+2*i+1}"))
    ops.append(lambda: DS(f"ds_write_b128 v{vHw}, {R(Q,4)} offset:{off}", "qw"))
    return ops
qa = [[vHr, 0], [1, 5]]
def qfrag(t):
    for j in range(2):
        DS(f"ds_read_b128 {R(vQ[t][j],4)}, v{qa[t&1][j]} offset:{(t>>1)*4096}", f"Q{t}")
if "noearly" not in OPT:
    I("s_barrier")
I(f"s_add_u32 s{sT0}, s{sQA}, 4096")
for c in range(2):
    I(f"buffer_load_dwordx4 {R(vQ[2][c],4)}, v{vDV}, {SR(sQ)}, s{sT0} offen offset:{c*1024}")
stamp()
for c in range(2):
    I(f"s_waitcnt vmcnt({7-c})")
    if c == 0: stamp()
    for f in qscale_lin(vS[2] + 4 * c, vS[1] + 8 * c, c * 1024): f()
st.wait_all_lds("vmcnt(2)")
stamp()
I("s_barrier")
stamp()
for f in kreads(0, 0): f()
qfrag(0); qfrag(1)
for f in vreads(0, 0) + kreads(1, 1): f()
st.wait_lds(["K0", "Q0"])
mfma(vS[0], vK[0], vQ[0][0], None)
mfma(vS[0], vK[0] + 4, vQ[0][1], vS[0])
I("s_nop 7")
I("s_nop 2")
stamp()

def pm_loads(u, side, last):
    if u & 1 == 0: return
    p = u >> 1
    if p + 1 <= 7 or not last: spread(side, vreads((p + 1) & 3, (p + 1) & 1), [0, 1, 3, 4])
    if p + 2 <= 7 or not last: spread(side, kreads((p + 2) & 3, p & 1), [6, 7])
assert vQ[3][1] == vQ[3][0] + 4
for u in range(16):
    side = {}; pre = []
    pm_loads(u, side, False)
    if u == 4:
        pre.append(lambda: I("s_waitcnt vmcnt(0)"))
        spread(side, qscale_lin(vQ[2][0], vQ[3][0], 4096) + qscale_lin(vQ[2][1], vQ[3][0], 5120), list(range(0, 16)))
    if u == 6:
        pre += [lambda: st.wait_lds("qw"), lambda: I("s_barrier"), lambda: qfrag(2), lambda: qfrag(3), dma_k]
    if u == 7: pre.append(dma_v)
    if u == 13: pre += [lambda: I("s_waitcnt vmcnt(0)"), lambda: I("s_barrier"), next_slot, addr_k]
    if u == 14: pre.append(dma_k)
    if u == 15: pre += [addr_v, dma_v]
    phase("first", u, pre, side)
stamp()
entry_state = list(st.lds)

st.raw(".p2align 6")
Lb("L_loop")
loop_start = len(st.lines)
for u in range(16):
    side = {}; pre = []
    t, j = u & 3, u >> 2
    if u == 11:
        pre += [lambda: I("s_waitcnt vmcnt(0)"), lambda: I("s_barrier"), next_slot, addr_k, addr_v]
    if u == 12:
        pre += [lambda: I(f"s_cmp_lt_u32 s{sStage}, 6"), lambda: I("s_cbranch_scc0 L_nodma1"), dma_k, lambda: Lb("L_nodma1")]
    if u == 13:
        pre += [lambda: I(f"s_cmp_lt_u32 s{sStage}, 6"), lambda: I("s_cbranch_scc0 L_nodma2"), dma_v, lambda: Lb("L_nodma2")]
    if t == 3: spread(side, kreads((j + 2) & 3, j & 1), [0, 1])
    if t == 2: spread(side, vreads((j + 1) & 3, (j + 1) & 1), [0, 1, 3, 4])
    phase("mid", u, pre, side)
if STAMP:
    I("s_memtime s[46:47]"); I("s_memrealtime s[48:49]"); st.wait_all_lds()
    I(f"s_lshl_b32 m0, s{sStage}, 1"); I("s_nop 0")
    I("s_movreld_b32 s78, s46"); I("s_movreld_b32 s79, s48")
assert st.lds == entry_state, (st.lds, entry_state)
I(f"s_add_u32 s{sStage}, s{sStage}, 1")
I(f"s_cmp_lt_u32 s{sStage}, 7")
I("s_cbranch_scc1 L_loop")
loop_end = len(st.lines)

fin1 = final_ops(1, 0)
for u in range(16):
    side = {}; pre = []
    pm_loads(u, side, True)
    if u == 8: spread(side, send_ops(0, 0), [2, 3, 4, 5, 6])
    if u == 10:
        pre += [lambda: st.wait_lds("xw"), lambda: I("s_barrier")]
        spread(side, recv_ops(1, 0), [0, 1, 2, 3, 4])
    if u == 11: spread(side, fin1[:24], list(range(2, 16)))
    if u == 12: spread(side, fin1[24:], list(range(0, 16)))
    if u == 15: spread(side, send_ops(2, 1), [15])
    phase("last", u, pre, side, noqk=(u == 15))
stamp()
smf32(vO[3], vV[1] + 4, vS[3] + 8)
smf16(vL[3], vS[3] + 8)
st.wait_lds("xw")
I("s_barrier")
stamp()
for f in recv_ops(3, 1): f()
I("s_nop 3")
for f in final_ops(3, 1): f()
I(f"s_cmp_eq_u64 s[{sOK}:{sOK+1}], -1")
I("s_cbranch_scc0 L_fallback")
Lb("L_done")
if "dbg" in OPT:
    I("s_waitcnt vmcnt(0)")
    I("s_memtime s[50:51]"); I("s_memrealtime s[52:53]"); I("s_waitcnt lgkmcnt(0)")
    I("s_not_b32 s54, s48"); I("s_sub_u32 s50, s50, s46"); I("s_sub_u32 s55, s52, s48")
    I("v_mov_b32 v4, 0"); I("v_mov_b32 v5, s54"); I("v_mov_b32 v6, s52"); I("v_mov_b32 v1, s50"); I("v_mov_b32 v2, s55")
    I("v_cmp_eq_u32 vcc, 0, v12"); I("s_nop 1"); I("s_and_saveexec_b64 s[56:57], vcc")
    I("global_atomic_umax v4, v5, s[44:45]"); I("global_atomic_umax v4, v6, s[44:45] offset:4")
    I("global_atomic_add v4, v1, s[44:45] offset:8"); I("global_atomic_add v4, v2, s[44:45] offset:12")
    I("global_atomic_umax v4, v2, s[44:45] offset:16")
if STAMP:
    stamp()
    I("s_waitcnt vmcnt(0)")
    stamp()
    I("s_lshl_b32 s50, s2, 3"); I(f"s_add_u32 s50, s50, s{sWave}"); I("s_lshl_b32 s50, s50, 8")
    order = list(range(52, 52 + 14, 2)) + list(range(80, 92, 2)) + list(range(52 + 14, pst[0], 2))
    for k, p in enumerate(order):
        I(f"v_mov_b32 v4, s{p}"); I(f"v_mov_b32 v5, s{p+1}"); I("v_mov_b32 v6, s50")
        I(f"global_store_dwordx2 v6, v[4:5], s[44:45] offset:{8*k}")
    print("stamps:", len(order))
Lb("L_end")
I("s_endpgm")
main_end = len(st.lines)

KT = [1, 3]
vC = [vS[2], vS[3]]
def crosshalf_to_C(t):
    m = vT + 4 + t
    I(f"v_mov_b32 v{vT+6}, v{m}")
    I("s_nop 1")
    I(f"v_permlane32_swap_b32 v{vT+6}, v{m}")
    I("s_nop 1")
    I(f"v_max_f32 v{m}, v{m}, v{vT+6}")
    for i in range(16):
        I(f"v_sub_f32 v{vC[t]+i}, 0, v{m}")
Lb("L_fallback")
I(f"s_mov_b32 s{sG}, s{sHead}")
I(f"s_mov_b32 s{sStage}, 0")
I(f"v_mov_b32 v{vT+4}, 0xff800000")
I(f"v_mov_b32 v{vT+5}, 0xff800000")
Lb("L_fb1")
for j in range(2):
    I(f"buffer_load_dwordx4 {R(vK[0]+4*j,4)}, v{vQoff}, {SR(sK)}, s{sG} offen offset:{j*32}")
I("s_waitcnt vmcnt(0)")
for t in range(2):
    mfma(vS[t], vK[0], vQ[KT[t]][0], None)
    mfma(vS[t], vK[0] + 4, vQ[KT[t]][1], vS[t])
I("s_nop 15")
I("s_nop 3")
for t in range(2):
    m = vT + 4 + t
    for k in range(0, 16, 2):
        I(f"v_max3_f32 v{m}, v{m}, v{vS[t]+k}, v{vS[t]+k+1}")
I(f"s_add_u32 s{sG}, s{sG}, 2048")
I(f"s_add_u32 s{sStage}, s{sStage}, 1")
I(f"s_cmp_lt_u32 s{sStage}, 64")
I("s_cbranch_scc1 L_fb1")
crosshalf_to_C(0)
crosshalf_to_C(1)
for t in KT:
    for i in range(16): I(f"v_mov_b32 v{vO[t]+i}, 0")
    for i in range(4): I(f"v_mov_b32 v{vL[t]+i}, 0")
I(f"s_mov_b32 s{sG}, s{sHead}")
I(f"s_mov_b32 s{sStage}, 0")
Lb("L_fb2")
for j in range(2):
    I(f"buffer_load_dwordx4 {R(vK[0]+4*j,4)}, v{vQoff}, {SR(sK)}, s{sG} offen offset:{j*32}")
for j in range(2):
    for e in range(8):
        I(f"buffer_load_ushort v{vO[0]+8*j+e}, v{vFV}, {SR(sV)}, s{sG} offen offset:{(16*j+e)*64}")
I("s_waitcnt vmcnt(0)")
for i in range(8):
    I(f"v_lshl_or_b32 v{vV[0]+i}, v{vO[0]+2*i+1}, 16, v{vO[0]+2*i}")
for t in range(2):
    mfma(vS[t], vK[0], vQ[KT[t]][0], vC[t])
    mfma(vS[t], vK[0] + 4, vQ[KT[t]][1], vS[t])
I("s_nop 15")
I("s_nop 3")
for t in range(2):
    for i in range(16): vexp(vS[t] + i)
I("s_nop 3")
for t in range(2):
    smf32(vO[KT[t]], vV[0], vS[t])
    smf32(vO[KT[t]], vV[0] + 4, vS[t] + 8)
    smf16(vL[KT[t]], vS[t])
    smf16(vL[KT[t]], vS[t] + 8)
I(f"s_add_u32 s{sG}, s{sG}, 2048")
I(f"s_add_u32 s{sStage}, s{sStage}, 1")
I(f"s_cmp_lt_u32 s{sStage}, 64")
I("s_nop 15")
I("s_cbranch_scc1 L_fb2")
I("s_nop 15")
for sel, t in enumerate(KT):
    I(f"v_rcp_f32 v{vT+2}, v{vL[t]}")
    I("s_nop 0")
    I(f"v_mov_b32 v{vT+3}, v{vT+2}")
    for f in norm_store_ops(t, sel): f()
    I("s_nop 1")
I("s_branch L_done")

nv = (NVGPR + 3) // 4 * 4
for l in ['.section .rodata,"a"', ".p2align 6", f".amdhsa_kernel {NAME}_kernel",
          f"  .amdhsa_next_free_vgpr {nv}", f"  .amdhsa_next_free_sgpr {100 if STAMP else 64}", f"  .amdhsa_accum_offset {nv}",
          "  .amdhsa_group_segment_fixed_size 0", "  .amdhsa_kernarg_size 48", "  .amdhsa_user_sgpr_count 2",
          "  .amdhsa_user_sgpr_kernarg_segment_ptr 1", "  .amdhsa_system_sgpr_workgroup_id_x 1",
          ".end_amdhsa_kernel", ""]: st.raw(l)
L = st.lines
bad = check_hazards(L, "linear") + check_hazards(L[loop_start:loop_end] * 2, "loop wrap")
assert bad == 0
dst = sys.argv[1] if len(sys.argv) > 1 else f"cdna_kernels/{NAME}.s"
open(dst, "w").write("\n".join(L))
print("wrote", dst, "vgprs", NVGPR)
```

```python
import sys, struct, os
sys.path.insert(0, os.path.dirname(os.path.abspath(__file__)))
from asmlib import Stream, check_hazards
STAMP = bool(os.environ.get("STAMP"))
OPT = set(os.environ.get("OPT", "").split(","))
NAME = "standalone__fused_io_aware_attn__prompt"
st = Stream()
I, Lb, C, DS = st.I, st.Lb, st.C, st.DS
def f32hex(x): return "0x%08x" % struct.unpack("<I", struct.pack("<f", x))[0]
CSCALE = (32 ** -0.5) * 1.4426950408889634
STORE_FLAGS = "" if "plainst" in OPT else " nt"

class Alloc:
    def __init__(s, base): s.n = base
    def get(s, k, al=4):
        s.n = (s.n + al - 1) // al * al
        r = s.n; s.n += k; return r
va = Alloc(0)
vT = va.get(8, 1)
vCs = va.get(2, 2)
vQoff = va.get(1, 1); vDK = va.get(1, 1); vDV = va.get(1, 1)
vKl0 = va.get(1, 1); vKl1 = va.get(1, 1); vVl = va.get(1, 1)
vKa0 = va.get(1, 1); vKa1 = va.get(1, 1); vVa = va.get(1, 1)
vIdx = va.get(1, 1); vFV = va.get(1, 1)
vXw = va.get(1, 1); vXr = va.get(1, 1); vHw = va.get(1, 1); vHr = va.get(1, 1); vLw = va.get(1, 1); vLr = va.get(1, 1)
vOnes = va.get(4)
vQ = [[va.get(4) for j in range(2)] for t in range(4)]
vO = [va.get(16) for t in range(4)]
vL = [va.get(4) for t in range(4)]
vS = [va.get(16) for b in range(4)]
vK = [va.get(8) for b in range(2)]
vV = [va.get(8) for b in range(2)]
NVGPR = va.n
assert NVGPR <= 256
def R(b, n): return f"v[{b}:{b+n-1}]"

sQ, sK, sV, sO = 12, 16, 20, 24
sHead, sWave, sQA, sG, sM, sStage, sSlot, sT0, sT1, sQB, sHk = 28, 29, 30, 31, 32, 33, 34, 35, 36, 37, 38
sOK = 40
sTmp = 42
def SR(b): return f"s[{b}:{b+3}]"

def mfma(d, a, b, c):
    cs = "0" if c is None else R(c, 16)
    I(f"v_mfma_f32_32x32x16_bf16 {R(d,16)}, {R(a,4)}, {R(b,4)}, {cs}")
def smf32(d, a, b): I(f"v_smfmac_f32_32x32x32_bf16 {R(d,16)}, {R(a,4)}, {R(b,8)}, v{vIdx}")
def smf16(d, b): I(f"v_smfmac_f32_16x16x64_bf16 {R(d,4)}, {R(vOnes,4)}, {R(b,8)}, v{vIdx}")
def vexp(r): I(f"v_exp_f32 v{r}, v{r}")
def kreads(jl, buf):
    tag = f"K{buf}"
    return [lambda: DS(f"ds_read_b128 {R(vK[buf],4)}, v{vKa0} offset:{jl*4096}", tag),
            lambda: DS(f"ds_read_b128 {R(vK[buf]+4,4)}, v{vKa1} offset:{jl*4096}", tag)]
def vreads(jl, buf):
    tag = f"V{buf}"
    return [(lambda j=j, x=x: DS(f"ds_read_b64_tr_b16 {R(vV[buf]+4*j+2*x,2)}, v{vVa} offset:{16384+jl*4096+j*1024+x*256}", tag)) for j in range(2) for x in range(2)]
def dma_k():
    for l in [f"s_mov_b32 m0, s{sM}", "s_nop 0",
              f"buffer_load_dwordx4 v{vDK}, {SR(sK)}, s{sG} offen lds",
              f"buffer_load_dwordx4 v{vDK}, {SR(sK)}, s{sG} offen offset:1024 lds"]: I(l)
def dma_v():
    for l in [f"s_add_u32 m0, s{sM}, 16384", "s_nop 0",
              f"buffer_load_dwordx4 v{vDV}, {SR(sV)}, s{sG} offen lds",
              f"buffer_load_dwordx4 v{vDV}, {SR(sV)}, s{sG} offen offset:1024 lds",
              f"s_add_u32 s{sG}, s{sG}, 16384", f"s_add_u32 s{sM}, s{sM}, 32768", f"s_and_b32 s{sM}, s{sM}, 0x1ffff"]: I(l)
def next_slot():
    I(f"s_add_u32 s{sSlot}, s{sSlot}, 32768")
    I(f"s_and_b32 s{sSlot}, s{sSlot}, 0x1ffff")
def addr_k():
    I(f"v_add_u32 v{vKa0}, s{sSlot}, v{vKl0}")
    I(f"v_add_u32 v{vKa1}, s{sSlot}, v{vKl1}")
def addr_v():
    I(f"v_add_u32 v{vVa}, s{sSlot}, v{vVl}")
pst = [52]
def stamp():
    if not STAMP: return
    I("s_memtime s[46:47]"); I("s_memrealtime s[48:49]"); st.wait_all_lds()
    I(f"s_mov_b32 s{pst[0]}, s46"); I(f"s_mov_b32 s{pst[0]+1}, s48"); pst[0] += 2

def qscale_ops(t, T, sel):
    ops = []
    for j in range(2):
        for i in range(4):
            r = vQ[t][j] + i
            ops.append(lambda r=r, i=i: I(f"v_lshlrev_b32 v{T+2*i}, 16, v{r}"))
            ops.append(lambda r=r, i=i: I(f"v_and_b32 v{T+2*i+1}, 0xffff0000, v{r}"))
        for i in range(4):
            ops.append(lambda i=i: I(f"v_pk_mul_f32 {R(T+2*i,2)}, {R(T+2*i,2)}, {R(vCs,2)}"))
        for i in range(4):
            ops.append(lambda i=i, j=j: I(f"v_cvt_pk_bf16_f32 v{vQ[t][j]+i}, v{T+2*i}, v{T+2*i+1}"))
        ops.append(lambda j=j: DS(f"ds_write_b128 v{vHw}, {R(vQ[t][j],4)} offset:{sel*2048+j*1024}", "qw"))
    return ops
def qfetch(t, sel):
    for j in range(2):
        DS(f"ds_read_b128 {R(vQ[t][j],4)}, v{vHr} offset:{sel*2048+j*1024}", f"Q{t}")

def send_ops(t, sel):
    ops = [(lambda c=c: DS(f"ds_write_b128 v{vXw}, {R(vO[t]+4*c,4)} offset:{sel*32768+c*1024}", "xw")) for c in range(4)]
    ops.append(lambda: DS(f"ds_write_b32 v{vLw}, v{vL[t]} offset:{sel*2048}", "xw"))
    return ops
def recv_ops(t, sel):
    X = vO[t - 1]
    ops = [lambda: DS(f"ds_read_b32 v{vT+1}, v{vLr} offset:{sel*2048}", "xl")]
    ops += [(lambda c=c: DS(f"ds_read_b128 {R(X+4*c,4)}, v{vXr} offset:{sel*32768+c*1024}", f"x{c}")) for c in range(4)]
    return ops
def final_ops(t, sel):
    X = vO[t - 1]; O = vO[t]; z = vT + 6
    ops = []
    ops.append(lambda: st.wait_lds("xl"))
    ops.append(lambda: I(f"v_add_f32 v{vL[t]}, v{vL[t]}, v{vT+1}"))
    ops.append(lambda: I(f"v_rcp_f32 v{vT+2}, v{vL[t]}"))
    ops.append(lambda: I(f"v_cmp_le_f32 s[{sTmp}:{sTmp+1}], 1.0, v{vL[t]}"))
    ops.append(lambda: I(f"v_mov_b32 v{vT+3}, v{vT+2}"))
    ops.append(lambda: I(f"s_and_b64 s[{sOK}:{sOK+1}], s[{sOK}:{sOK+1}], s[{sTmp}:{sTmp+1}]"))
    for c in range(4):
        ops.append(lambda c=c: st.wait_lds(f"x{c}"))
        for i in (0, 2):
            r = 4 * c + i
            ops.append(lambda r=r: I(f"v_pk_add_f32 {R(O+r,2)}, {R(O+r,2)}, {R(X+r,2)}"))
        for i in (0, 2):
            r = 4 * c + i
            first = f"|v{vL[t]}|" if r == 0 else f"v{z}"
            ops.append(lambda r=r, first=first: I(f"v_maximum3_f32 v{z}, {first}, |v{O+r}|, |v{O+r+1}|"))
    ops.append(lambda: I(f"v_cmp_gt_f32 s[{sTmp}:{sTmp+1}], v{vT+7}, v{z}"))
    ops += norm_store_ops(t, sel)
    ops.append(lambda: I(f"s_and_b64 s[{sOK}:{sOK+1}], s[{sOK}:{sOK+1}], s[{sTmp}:{sTmp+1}]"))
    return ops
def norm_store_ops(t, sel):
    X = vO[t - 1]; O = vO[t]
    ops = []
    for r in range(0, 16, 2):
        ops.append(lambda r=r: I(f"v_pk_mul_f32 {R(O+r,2)}, {R(O+r,2)}, {R(vT+2,2)}"))
    for i in range(8):
        ops.append(lambda i=i: I(f"v_cvt_pk_bf16_f32 v{X+i}, v{O+2*i}, v{O+2*i+1}"))
    ops.append(lambda: I("s_nop 1"))
    for g in (0, 2):
        ops.append(lambda g=g: I(f"v_permlane32_swap_b32 v{X+2*g}, v{X+2*g+2}"))
        ops.append(lambda g=g: I(f"v_permlane32_swap_b32 v{X+2*g+1}, v{X+2*g+3}"))
    for g in (0, 2):
        ops.append(lambda g=g: I(f"buffer_store_dwordx4 {R(X+2*g,4)}, v{vQoff}, {SR(sO)}, s{sQB} offen offset:{g*16}{STORE_FLAGS}" if sel == 0 else
                                 f"buffer_store_dwordx4 {R(X+2*g,4)}, v{vQoff}, {SR(sO)}, s{sT1} offen offset:{g*16}{STORE_FLAGS}"))
    return ops

def unit(kind, u):
    if u < 0: return dict(t=3, j=3, kb=1, vb=1, sb=3)
    if u > 15: return dict(t=0, j=0, kb=0, vb=0, sb=0)
    if kind == "mid": return dict(t=u & 3, j=u >> 2, kb=(u >> 2) & 1, vb=(u >> 2) & 1, sb=u & 3)
    return dict(t=2 * (u >> 3) + (u & 1), j=(u >> 1) & 3, kb=(u >> 1) & 1, vb=(u >> 1) & 1, sb=u & 3)

def phase(kind, u, pre=(), side=None, noqk=False):
    side = side or {}
    p, c, n = unit(kind, u - 1), unit(kind, u), unit(kind, u + 1)
    S = vS[c["sb"]]
    C(f"---- {kind} phase {u}")
    for f in pre: f()
    def E(*ks):
        for k in ks:
            vexp(S + k)
            for f in side.get(k, []): f()
    if not noqk:
        st.wait_lds([f"K{n['kb']}", f"Q{n['t']}"])
        mfma(vS[n["sb"]], vK[n["kb"]], vQ[n["t"]][0], None)
    E(0, 1, 2)
    if not noqk: mfma(vS[n["sb"]], vK[n["kb"]] + 4, vQ[n["t"]][1], vS[n["sb"]])
    E(3, 4, 5)
    smf32(vO[p["t"]], vV[p["vb"]] + 4, vS[p["sb"]] + 8)
    E(6, 7, 8)
    smf16(vL[p["t"]], vS[p["sb"]] + 8)
    E(9, 10)
    st.wait_lds(f"V{c['vb']}")
    smf32(vO[c["t"]], vV[c["vb"]], S)
    E(11, 12, 13)
    smf16(vL[c["t"]], S)
    E(14, 15)
def spread(side, ops, slots):
    n = len(slots); per = -(-len(ops) // n)
    for i, f in enumerate(ops):
        side.setdefault(slots[min(i // per, n - 1)], []).append(f)

hdr = open("cdna_kernels/%s.s.ref" % NAME).read().split("\n")
for l in hdr:
    if l.startswith("; @launch"): st.raw("; @launch grid=(256,1,1) block=(512,1,1) lds=135168")
    elif l.startswith(";"): st.raw(l)
    else: break
for l in ['.amdgcn_target "amdgcn-amd-amdhsa--gfx950"', ".text", f".globl {NAME}_kernel", ".p2align 8",
          f".type {NAME}_kernel,@function", f"{NAME}_kernel:"]: st.raw(l)

I("s_load_dwordx8 s[4:11], s[0:1], 0")
if STAMP:
    I("s_load_dwordx2 s[44:45], s[0:1], 40")
    I("s_memtime s[46:47]"); I("s_memrealtime s[48:49]")
if "dbg" in OPT:
    I("s_load_dwordx2 s[44:45], s[0:1], 32")
    I("s_memtime s[46:47]"); I("s_memrealtime s[48:49]")
I("s_cmp_ge_u32 s2, 256")
I("s_cbranch_scc1 L_end")
I("v_lshrrev_b32 v1, 6, v0")
I("v_and_b32 v2, 63, v0")
I("s_and_b32 s3, s2, 7")
I(f"s_lshr_b32 s{sT0}, s2, 3")
I(f"v_readfirstlane_b32 s{sWave}, v1")
I("s_lshl_b32 s3, s3, 3")
I(f"s_lshr_b32 s{sT1}, s{sT0}, 2")
I(f"s_add_u32 s3, s3, s{sT1}")
I(f"s_lshl_b32 s{sHead}, s3, 17")
I(f"s_and_b32 s{sT0}, s{sT0}, 3")
I(f"s_lshl_b32 s{sT0}, s{sT0}, 15")
I(f"s_add_u32 s{sT0}, s{sHead}, s{sT0}")
I(f"s_and_b32 s{sT1}, s{sWave}, 3")
I(f"s_lshl_b32 s{sT1}, s{sT1}, 13")
I(f"s_add_u32 s{sT0}, s{sT0}, s{sT1}")
I(f"s_lshr_b32 s{sHk}, s{sWave}, 2")
I(f"s_lshl_b32 s{sT1}, s{sHk}, 11")
I(f"s_add_u32 s{sQA}, s{sT0}, s{sT1}")
I(f"s_xor_b32 s{sT1}, s{sT1}, 2048")
I(f"s_add_u32 s{sQB}, s{sT0}, s{sT1}")
I(f"s_lshl_b32 s{sM}, s{sWave}, 11")
I(f"s_add_u32 s{sG}, s{sHead}, s{sM}")
I("v_and_b32 v3, 31, v2")
I("v_lshrrev_b32 v4, 5, v2")
I("v_lshlrev_b32 v5, 6, v3")
I(f"v_lshl_add_u32 v{vQoff}, v4, 4, v5")
I("v_lshrrev_b32 v6, 4, v2")
I("v_and_b32 v7, 3, v2")
I("v_xor_b32 v6, v6, v7")
I("v_lshrrev_b32 v7, 2, v2")
I("v_lshlrev_b32 v7, 6, v7")
I(f"v_lshl_add_u32 v{vDK}, v6, 4, v7")
I(f"v_lshlrev_b32 v{vDV}, 4, v2")
for sr in (sQ, sK, sV, sO):
    I(f"s_mov_b32 s{sr+2}, 8388608")
    I(f"s_mov_b32 s{sr+3}, 0x00020000")
I("s_waitcnt lgkmcnt(0)")
for sr, p in ((sQ, 4), (sK, 6), (sV, 8), (sO, 10)):
    I(f"s_mov_b32 s{sr}, s{p}")
    I(f"s_and_b32 s{sr+1}, s{p+1}, 0xffff")
if STAMP:
    I(f"s_mov_b32 s{pst[0]}, s46"); I(f"s_mov_b32 s{pst[0]+1}, s48"); pst[0] += 2
for c in range(2):
    I(f"buffer_load_dwordx4 {R(vS[2]+4*c,4)}, v{vDV}, {SR(sQ)}, s{sQA} offen offset:{c*1024}")
dma_k(); dma_v()
I(f"s_lshl_b32 s{sT1}, s{sHk}, 11")
I("v_lshrrev_b32 v6, 2, v3")
I("v_and_b32 v6, 3, v6")
I("v_xor_b32 v6, v6, v4")
I(f"v_lshl_add_u32 v{vKl0}, v6, 4, v5")
I(f"v_add_u32 v{vKl0}, s{sT1}, v{vKl0}")
I(f"v_xor_b32 v{vKl1}, 32, v{vKl0}")
I("v_and_b32 v6, 15, v2")
I("v_lshrrev_b32 v7, 2, v6")
I("v_lshl_add_u32 v7, v4, 3, v7")
I("v_lshlrev_b32 v7, 6, v7")
I("v_and_b32 v6, 3, v6")
I("v_lshl_add_u32 v7, v6, 3, v7")
I("v_bfe_u32 v6, v2, 4, 1")
I(f"v_lshl_add_u32 v{vVl}, v6, 5, v7")
I(f"v_add_u32 v{vVl}, s{sT1}, v{vVl}")
I(f"v_mov_b32 v{vKa0}, v{vKl0}")
I(f"v_mov_b32 v{vKa1}, v{vKl1}")
I(f"v_mov_b32 v{vVa}, v{vVl}")
I(f"v_mov_b32 v{vIdx}, 0xdddddddd")
I("v_lshlrev_b32 v6, 9, v4")
I(f"v_lshl_add_u32 v{vFV}, v3, 1, v6")
I(f"s_lshl_b32 s{sT0}, s{sWave}, 12")
I(f"v_add_u32 v{vXw}, s{sT0}, v{vDV}")
I(f"v_xor_b32 v{vXr}, 0x4000, v{vXw}")
I(f"s_and_b32 s{sT0}, s{sWave}, 3")
I(f"s_lshl_b32 s{sT0}, s{sT0}, 13")
I(f"s_add_u32 s{sT0}, s{sT0}, 0x18000")
I(f"s_add_u32 s{sT1}, s{sT1}, s{sT0}")
I(f"v_add_u32 v{vHw}, s{sT1}, v{vDK}")
I(f"v_add_u32 v{vHr}, s{sT0}, v{vKl0}")
I(f"v_xor_b32 v0, 32, v{vHr}")
I(f"v_xor_b32 v1, 0x800, v{vHr}")
I(f"v_xor_b32 v5, 0x820, v{vHr}")
I(f"s_lshl_b32 s{sT0}, s{sWave}, 8")
I(f"s_add_u32 s{sT0}, s{sT0}, 0x20000")
I(f"v_lshl_add_u32 v{vLw}, v2, 2, s{sT0}")
I(f"v_xor_b32 v{vLr}, 0x400, v{vLw}")
I("v_and_b32 v6, 7, v2")
I("v_cmp_eq_u32 vcc, 0, v6")
I(f"v_cmp_eq_u32 s[{sTmp}:{sTmp+1}], 4, v6")
I("v_mov_b32 v7, 0x3f803f80")
I(f"s_mov_b32 s{sStage}, 1")
I(f"s_mov_b32 s{sSlot}, 0")
I(f"v_cndmask_b32 v{vOnes}, 0, v7, vcc")
I(f"v_cndmask_b32 v{vOnes+1}, 0, v7, vcc")
I(f"v_cndmask_b32 v{vOnes+2}, 0, v7, s[{sTmp}:{sTmp+1}]")
I(f"v_cndmask_b32 v{vOnes+3}, 0, v7, s[{sTmp}:{sTmp+1}]")
I(f"v_mov_b32 v{vCs}, {f32hex(CSCALE)}")
I(f"v_mov_b32 v{vCs+1}, v{vCs}")
I(f"v_mov_b32 v{vT+7}, 0x7f800000")
I(f"s_mov_b64 s[{sOK}:{sOK+1}], -1")
I(f"s_add_u32 s{sT1}, s{sQB}, 4096")
assert vL[0] == vO[3] + 16
for r in range(vO[0], vL[3] + 4, 2): I(f"v_mov_b64 {R(r,2)}, 0")
for i in range(8, 16, 2): I(f"v_mov_b64 {R(vS[3]+i,2)}, 0")
for i in range(4, 8, 2): I(f"v_mov_b64 {R(vV[1]+i,2)}, 0")
def qscale_lin(Q, T, off):
    ops = []
    for i in range(4):
        ops.append(lambda i=i: I(f"v_lshlrev_b32 v{T+2*i}, 16, v{Q+i}"))
        ops.append(lambda i=i: I(f"v_and_b32 v{T+2*i+1}, 0xffff0000, v{Q+i}"))
    for i in range(4):
        ops.append(lambda i=i: I(f"v_pk_mul_f32 {R(T+2*i,2)}, {R(T+2*i,2)}, {R(vCs,2)}"))
    for i in range(4):
        ops.append(lambda i=i: I(f"v_cvt_pk_bf16_f32 v{Q+i}, v{T+2*i}, v{T+2*i+1}"))
    ops.append(lambda: DS(f"ds_write_b128 v{vHw}, {R(Q,4)} offset:{off}", "qw"))
    return ops
qa = [[vHr, 0], [1, 5]]
def qfrag(t):
    for j in range(2):
        DS(f"ds_read_b128 {R(vQ[t][j],4)}, v{qa[t&1][j]} offset:{(t>>1)*4096}", f"Q{t}")
if "noearly" not in OPT:
    I("s_barrier")
I(f"s_add_u32 s{sT0}, s{sQA}, 4096")
for c in range(2):
    I(f"buffer_load_dwordx4 {R(vQ[2][c],4)}, v{vDV}, {SR(sQ)}, s{sT0} offen offset:{c*1024}")
stamp()
for c in range(2):
    I(f"s_waitcnt vmcnt({7-c})")
    if c == 0: stamp()
    for f in qscale_lin(vS[2] + 4 * c, vS[1] + 8 * c, c * 1024): f()
st.wait_all_lds("vmcnt(2)")
stamp()
I("s_barrier")
stamp()
for f in kreads(0, 0): f()
qfrag(0); qfrag(1)
for f in vreads(0, 0) + kreads(1, 1): f()
st.wait_lds(["K0", "Q0"])
mfma(vS[0], vK[0], vQ[0][0], None)
mfma(vS[0], vK[0] + 4, vQ[0][1], vS[0])
I("s_nop 7")
I("s_nop 2")
stamp()

def pm_loads(u, side, last):
    if u & 1 == 0: return
    p = u >> 1
    if p + 1 <= 7 or not last: spread(side, vreads((p + 1) & 3, (p + 1) & 1), [0, 1, 3, 4])
    if p + 2 <= 7 or not last: spread(side, kreads((p + 2) & 3, p & 1), [6, 7])
assert vQ[3][1] == vQ[3][0] + 4
for u in range(16):
    side = {}; pre = []
    pm_loads(u, side, False)
    if u == 4:
        pre.append(lambda: I("s_waitcnt vmcnt(0)"))
        spread(side, qscale_lin(vQ[2][0], vQ[3][0], 4096) + qscale_lin(vQ[2][1], vQ[3][0], 5120), list(range(0, 16)))
    if u == 6:
        pre += [lambda: st.wait_lds("qw"), lambda: I("s_barrier"), lambda: qfrag(2), lambda: qfrag(3), dma_k]
    if u == 7: pre.append(dma_v)
    if u == 13: pre += [lambda: I("s_waitcnt vmcnt(0)"), lambda: I("s_barrier"), next_slot, addr_k]
    if u == 14: pre.append(dma_k)
    if u == 15: pre += [addr_v, dma_v]
    phase("first", u, pre, side)
stamp()
entry_state = list(st.lds)

st.raw(".p2align 6")
Lb("L_loop")
loop_start = len(st.lines)
for u in range(16):
    side = {}; pre = []
    t, j = u & 3, u >> 2
    if u == 11:
        pre += [lambda: I("s_waitcnt vmcnt(0)"), lambda: I("s_barrier"), next_slot, addr_k, addr_v]
    if u == 12:
        pre += [lambda: I(f"s_cmp_lt_u32 s{sStage}, 6"), lambda: I("s_cbranch_scc0 L_nodma1"), dma_k, lambda: Lb("L_nodma1")]
    if u == 13:
        pre += [lambda: I(f"s_cmp_lt_u32 s{sStage}, 6"), lambda: I("s_cbranch_scc0 L_nodma2"), dma_v, lambda: Lb("L_nodma2")]
    if t == 3: spread(side, kreads((j + 2) & 3, j & 1), [0, 1])
    if t == 2: spread(side, vreads((j + 1) & 3, (j + 1) & 1), [0, 1, 3, 4])
    phase("mid", u, pre, side)
if STAMP:
    I("s_memtime s[46:47]"); I("s_memrealtime s[48:49]"); st.wait_all_lds()
    I(f"s_lshl_b32 m0, s{sStage}, 1"); I("s_nop 0")
    I("s_movreld_b32 s78, s46"); I("s_movreld_b32 s79, s48")
assert st.lds == entry_state, (st.lds, entry_state)
I(f"s_add_u32 s{sStage}, s{sStage}, 1")
I(f"s_cmp_lt_u32 s{sStage}, 7")
I("s_cbranch_scc1 L_loop")
loop_end = len(st.lines)

fin1 = final_ops(1, 0)
for u in range(16):
    side = {}; pre = []
    pm_loads(u, side, True)
    if u == 8: spread(side, send_ops(0, 0), [2, 3, 4, 5, 6])
    if u == 10:
        pre += [lambda: st.wait_lds("xw"), lambda: I("s_barrier")]
        spread(side, recv_ops(1, 0), [0, 1, 2, 3, 4])
    if u == 11: spread(side, fin1[:24], list(range(2, 16)))
    if u == 12: spread(side, fin1[24:], list(range(0, 16)))
    if u == 15: spread(side, send_ops(2, 1), [15])
    phase("last", u, pre, side, noqk=(u == 15))
stamp()
smf32(vO[3], vV[1] + 4, vS[3] + 8)
smf16(vL[3], vS[3] + 8)
st.wait_lds("xw")
I("s_barrier")
stamp()
for f in recv_ops(3, 1): f()
I("s_nop 3")
for f in final_ops(3, 1): f()
I(f"s_cmp_eq_u64 s[{sOK}:{sOK+1}], -1")
I("s_cbranch_scc0 L_fallback")
Lb("L_done")
if "dbg" in OPT:
    I("s_waitcnt vmcnt(0)")
    I("s_memtime s[50:51]"); I("s_memrealtime s[52:53]"); I("s_waitcnt lgkmcnt(0)")
    I("s_sub_u32 s50, s50, s46"); I("s_sub_u32 s55, s52, s48")
    I("s_cmp_lt_u32 s2, 8"); I("s_cbranch_scc0 L_end"); I(f"s_cmp_eq_u32 s{sWave}, 7"); I("s_cbranch_scc0 L_end")
    I("s_lshl_b32 s54, s2, 3")
    I("v_mov_b32 v4, s54"); I("v_mov_b32 v2, s50"); I("v_mov_b32 v3, s55")
    I("global_store_dwordx2 v4, v[2:3], s[44:45]")
if STAMP:
    stamp()
    I("s_waitcnt vmcnt(0)")
    stamp()
    I("s_lshl_b32 s50, s2, 3"); I(f"s_add_u32 s50, s50, s{sWave}"); I("s_lshl_b32 s50, s50, 8")
    order = list(range(52, 52 + 14, 2)) + list(range(80, 92, 2)) + list(range(52 + 14, pst[0], 2))
    for k, p in enumerate(order):
        I(f"v_mov_b32 v4, s{p}"); I(f"v_mov_b32 v5, s{p+1}"); I("v_mov_b32 v6, s50")
        I(f"global_store_dwordx2 v6, v[4:5], s[44:45] offset:{8*k}")
    print("stamps:", len(order))
Lb("L_end")
I("s_endpgm")
main_end = len(st.lines)

KT = [1, 3]
vC = [vS[2], vS[3]]
def crosshalf_to_C(t):
    m = vT + 4 + t
    I(f"v_mov_b32 v{vT+6}, v{m}")
    I("s_nop 1")
    I(f"v_permlane32_swap_b32 v{vT+6}, v{m}")
    I("s_nop 1")
    I(f"v_max_f32 v{m}, v{m}, v{vT+6}")
    for i in range(16):
        I(f"v_sub_f32 v{vC[t]+i}, 0, v{m}")
Lb("L_fallback")
I(f"s_mov_b32 s{sG}, s{sHead}")
I(f"s_mov_b32 s{sStage}, 0")
I(f"v_mov_b32 v{vT+4}, 0xff800000")
I(f"v_mov_b32 v{vT+5}, 0xff800000")
Lb("L_fb1")
for j in range(2):
    I(f"buffer_load_dwordx4 {R(vK[0]+4*j,4)}, v{vQoff}, {SR(sK)}, s{sG} offen offset:{j*32}")
I("s_waitcnt vmcnt(0)")
for t in range(2):
    mfma(vS[t], vK[0], vQ[KT[t]][0], None)
    mfma(vS[t], vK[0] + 4, vQ[KT[t]][1], vS[t])
I("s_nop 15")
I("s_nop 3")
for t in range(2):
    m = vT + 4 + t
    for k in range(0, 16, 2):
        I(f"v_max3_f32 v{m}, v{m}, v{vS[t]+k}, v{vS[t]+k+1}")
I(f"s_add_u32 s{sG}, s{sG}, 2048")
I(f"s_add_u32 s{sStage}, s{sStage}, 1")
I(f"s_cmp_lt_u32 s{sStage}, 64")
I("s_cbranch_scc1 L_fb1")
crosshalf_to_C(0)
crosshalf_to_C(1)
for t in KT:
    for i in range(16): I(f"v_mov_b32 v{vO[t]+i}, 0")
    for i in range(4): I(f"v_mov_b32 v{vL[t]+i}, 0")
I(f"s_mov_b32 s{sG}, s{sHead}")
I(f"s_mov_b32 s{sStage}, 0")
Lb("L_fb2")
for j in range(2):
    I(f"buffer_load_dwordx4 {R(vK[0]+4*j,4)}, v{vQoff}, {SR(sK)}, s{sG} offen offset:{j*32}")
for j in range(2):
    for e in range(8):
        I(f"buffer_load_ushort v{vO[0]+8*j+e}, v{vFV}, {SR(sV)}, s{sG} offen offset:{(16*j+e)*64}")
I("s_waitcnt vmcnt(0)")
for i in range(8):
    I(f"v_lshl_or_b32 v{vV[0]+i}, v{vO[0]+2*i+1}, 16, v{vO[0]+2*i}")
for t in range(2):
    mfma(vS[t], vK[0], vQ[KT[t]][0], vC[t])
    mfma(vS[t], vK[0] + 4, vQ[KT[t]][1], vS[t])
I("s_nop 15")
I("s_nop 3")
for t in range(2):
    for i in range(16): vexp(vS[t] + i)
I("s_nop 3")
for t in range(2):
    smf32(vO[KT[t]], vV[0], vS[t])
    smf32(vO[KT[t]], vV[0] + 4, vS[t] + 8)
    smf16(vL[KT[t]], vS[t])
    smf16(vL[KT[t]], vS[t] + 8)
I(f"s_add_u32 s{sG}, s{sG}, 2048")
I(f"s_add_u32 s{sStage}, s{sStage}, 1")
I(f"s_cmp_lt_u32 s{sStage}, 64")
I("s_nop 15")
I("s_cbranch_scc1 L_fb2")
I("s_nop 15")
for sel, t in enumerate(KT):
    I(f"v_rcp_f32 v{vT+2}, v{vL[t]}")
    I("s_nop 0")
    I(f"v_mov_b32 v{vT+3}, v{vT+2}")
    for f in norm_store_ops(t, sel): f()
    I("s_nop 1")
I("s_branch L_done")

nv = (NVGPR + 3) // 4 * 4
for l in ['.section .rodata,"a"', ".p2align 6", f".amdhsa_kernel {NAME}_kernel",
          f"  .amdhsa_next_free_vgpr {nv}", f"  .amdhsa_next_free_sgpr {100 if STAMP else 64}", f"  .amdhsa_accum_offset {nv}",
          "  .amdhsa_group_segment_fixed_size 0", "  .amdhsa_kernarg_size 48", "  .amdhsa_user_sgpr_count 2",
          "  .amdhsa_user_sgpr_kernarg_segment_ptr 1", "  .amdhsa_system_sgpr_workgroup_id_x 1",
          ".end_amdhsa_kernel", ""]: st.raw(l)
L = st.lines
bad = check_hazards(L, "linear") + check_hazards(L[loop_start:loop_end] * 2, "loop wrap")
assert bad == 0
dst = sys.argv[1] if len(sys.argv) > 1 else f"cdna_kernels/{NAME}.s"
open(dst, "w").write("\n".join(L))
print("wrote", dst, "vgprs", NVGPR)
```

```python
import sys, struct, os
sys.path.insert(0, os.path.dirname(os.path.abspath(__file__)))
from asmlib import Stream, check_hazards
STAMP = bool(os.environ.get("STAMP"))
OPT = set(os.environ.get("OPT", "").split(","))
NAME = "standalone__fused_io_aware_attn__prompt"
st = Stream()
I, Lb, C, DS = st.I, st.Lb, st.C, st.DS
def f32hex(x): return "0x%08x" % struct.unpack("<I", struct.pack("<f", x))[0]
CSCALE = (32 ** -0.5) * 1.4426950408889634
STORE_FLAGS = "" if "plainst" in OPT else " sc1" if "sc1" in OPT else " sc0 sc1" if "sc01" in OPT else " sc1 nt" if "sc1nt" in OPT else " nt"

class Alloc:
    def __init__(s, base): s.n = base
    def get(s, k, al=4):
        s.n = (s.n + al - 1) // al * al
        r = s.n; s.n += k; return r
va = Alloc(0)
vT = va.get(8, 1)
vCs = va.get(2, 2)
vQoff = va.get(1, 1); vDK = va.get(1, 1); vDV = va.get(1, 1)
vKl0 = va.get(1, 1); vKl1 = va.get(1, 1); vVl = va.get(1, 1)
vKa0 = va.get(1, 1); vKa1 = va.get(1, 1); vVa = va.get(1, 1)
vIdx = va.get(1, 1); vFV = va.get(1, 1)
vXw = va.get(1, 1); vXr = va.get(1, 1); vHw = va.get(1, 1); vHr = va.get(1, 1); vLw = va.get(1, 1); vLr = va.get(1, 1)
vOnes = va.get(4)
vQ = [[va.get(4) for j in range(2)] for t in range(4)]
vO = [va.get(16) for t in range(4)]
vL = [va.get(4) for t in range(4)]
vS = [va.get(16) for b in range(4)]
vK = [va.get(8) for b in range(2)]
vV = [va.get(8) for b in range(2)]
NVGPR = va.n
assert NVGPR <= 256
def R(b, n): return f"v[{b}:{b+n-1}]"

sQ, sK, sV, sO = 12, 16, 20, 24
sHead, sWave, sQA, sG, sM, sStage, sSlot, sT0, sT1, sQB, sHk = 28, 29, 30, 31, 32, 33, 34, 35, 36, 37, 38
sOK = 40
sTmp = 42
def SR(b): return f"s[{b}:{b+3}]"

def mfma(d, a, b, c):
    cs = "0" if c is None else R(c, 16)
    I(f"v_mfma_f32_32x32x16_bf16 {R(d,16)}, {R(a,4)}, {R(b,4)}, {cs}")
def smf32(d, a, b): I(f"v_smfmac_f32_32x32x32_bf16 {R(d,16)}, {R(a,4)}, {R(b,8)}, v{vIdx}")
def smf16(d, b): I(f"v_smfmac_f32_16x16x64_bf16 {R(d,4)}, {R(vOnes,4)}, {R(b,8)}, v{vIdx}")
def vexp(r): I(f"v_exp_f32 v{r}, v{r}")
def kreads(jl, buf):
    tag = f"K{buf}"
    return [lambda: DS(f"ds_read_b128 {R(vK[buf],4)}, v{vKa0} offset:{jl*4096}", tag),
            lambda: DS(f"ds_read_b128 {R(vK[buf]+4,4)}, v{vKa1} offset:{jl*4096}", tag)]
def vreads(jl, buf):
    tag = f"V{buf}"
    return [(lambda j=j, x=x: DS(f"ds_read_b64_tr_b16 {R(vV[buf]+4*j+2*x,2)}, v{vVa} offset:{16384+jl*4096+j*1024+x*256}", tag)) for j in range(2) for x in range(2)]
def dma_k():
    for l in [f"s_mov_b32 m0, s{sM}", "s_nop 0",
              f"buffer_load_dwordx4 v{vDK}, {SR(sK)}, s{sG} offen lds",
              f"buffer_load_dwordx4 v{vDK}, {SR(sK)}, s{sG} offen offset:1024 lds"]: I(l)
def dma_v():
    for l in [f"s_add_u32 m0, s{sM}, 16384", "s_nop 0",
              f"buffer_load_dwordx4 v{vDV}, {SR(sV)}, s{sG} offen lds",
              f"buffer_load_dwordx4 v{vDV}, {SR(sV)}, s{sG} offen offset:1024 lds",
              f"s_add_u32 s{sG}, s{sG}, 16384", f"s_add_u32 s{sM}, s{sM}, 32768", f"s_and_b32 s{sM}, s{sM}, 0x1ffff"]: I(l)
def next_slot():
    I(f"s_add_u32 s{sSlot}, s{sSlot}, 32768")
    I(f"s_and_b32 s{sSlot}, s{sSlot}, 0x1ffff")
def addr_k():
    I(f"v_add_u32 v{vKa0}, s{sSlot}, v{vKl0}")
    I(f"v_add_u32 v{vKa1}, s{sSlot}, v{vKl1}")
def addr_v():
    I(f"v_add_u32 v{vVa}, s{sSlot}, v{vVl}")
pst = [52]
def stamp():
    if not STAMP: return
    I("s_memtime s[46:47]"); I("s_memrealtime s[48:49]"); st.wait_all_lds()
    I(f"s_mov_b32 s{pst[0]}, s46"); I(f"s_mov_b32 s{pst[0]+1}, s48"); pst[0] += 2

def qscale_ops(t, T, sel):
    ops = []
    for j in range(2):
        for i in range(4):
            r = vQ[t][j] + i
            ops.append(lambda r=r, i=i: I(f"v_lshlrev_b32 v{T+2*i}, 16, v{r}"))
            ops.append(lambda r=r, i=i: I(f"v_and_b32 v{T+2*i+1}, 0xffff0000, v{r}"))
        for i in range(4):
            ops.append(lambda i=i: I(f"v_pk_mul_f32 {R(T+2*i,2)}, {R(T+2*i,2)}, {R(vCs,2)}"))
        for i in range(4):
            ops.append(lambda i=i, j=j: I(f"v_cvt_pk_bf16_f32 v{vQ[t][j]+i}, v{T+2*i}, v{T+2*i+1}"))
        ops.append(lambda j=j: DS(f"ds_write_b128 v{vHw}, {R(vQ[t][j],4)} offset:{sel*2048+j*1024}", "qw"))
    return ops
def qfetch(t, sel):
    for j in range(2):
        DS(f"ds_read_b128 {R(vQ[t][j],4)}, v{vHr} offset:{sel*2048+j*1024}", f"Q{t}")

def send_ops(t, sel):
    ops = [(lambda c=c: DS(f"ds_write_b128 v{vXw}, {R(vO[t]+4*c,4)} offset:{sel*32768+c*1024}", "xw")) for c in range(4)]
    ops.append(lambda: DS(f"ds_write_b32 v{vLw}, v{vL[t]} offset:{sel*2048}", "xw"))
    return ops
def recv_ops(t, sel):
    X = vO[t - 1]
    ops = [lambda: DS(f"ds_read_b32 v{vT+1}, v{vLr} offset:{sel*2048}", "xl")]
    ops += [(lambda c=c: DS(f"ds_read_b128 {R(X+4*c,4)}, v{vXr} offset:{sel*32768+c*1024}", f"x{c}")) for c in range(4)]
    return ops
def final_ops(t, sel):
    X = vO[t - 1]; O = vO[t]; z = vT + 6
    ops = []
    ops.append(lambda: st.wait_lds("xl"))
    ops.append(lambda: I(f"v_add_f32 v{vL[t]}, v{vL[t]}, v{vT+1}"))
    ops.append(lambda: I(f"v_rcp_f32 v{vT+2}, v{vL[t]}"))
    ops.append(lambda: I(f"v_cmp_le_f32 s[{sTmp}:{sTmp+1}], 1.0, v{vL[t]}"))
    ops.append(lambda: I(f"v_mov_b32 v{vT+3}, v{vT+2}"))
    ops.append(lambda: I(f"s_and_b64 s[{sOK}:{sOK+1}], s[{sOK}:{sOK+1}], s[{sTmp}:{sTmp+1}]"))
    for c in range(4):
        ops.append(lambda c=c: st.wait_lds(f"x{c}"))
        for i in (0, 2):
            r = 4 * c + i
            ops.append(lambda r=r: I(f"v_pk_add_f32 {R(O+r,2)}, {R(O+r,2)}, {R(X+r,2)}"))
        for i in (0, 2):
            r = 4 * c + i
            first = f"|v{vL[t]}|" if r == 0 else f"v{z}"
            ops.append(lambda r=r, first=first: I(f"v_maximum3_f32 v{z}, {first}, |v{O+r}|, |v{O+r+1}|"))
    ops.append(lambda: I(f"v_cmp_gt_f32 s[{sTmp}:{sTmp+1}], v{vT+7}, v{z}"))
    ops += norm_store_ops(t, sel)
    ops.append(lambda: I(f"s_and_b64 s[{sOK}:{sOK+1}], s[{sOK}:{sOK+1}], s[{sTmp}:{sTmp+1}]"))
    return ops
def norm_store_ops(t, sel):
    X = vO[t - 1]; O = vO[t]
    ops = []
    for r in range(0, 16, 2):
        ops.append(lambda r=r: I(f"v_pk_mul_f32 {R(O+r,2)}, {R(O+r,2)}, {R(vT+2,2)}"))
    for i in range(8):
        ops.append(lambda i=i: I(f"v_cvt_pk_bf16_f32 v{X+i}, v{O+2*i}, v{O+2*i+1}"))
    ops.append(lambda: I("s_nop 1"))
    for g in (0, 2):
        ops.append(lambda g=g: I(f"v_permlane32_swap_b32 v{X+2*g}, v{X+2*g+2}"))
        ops.append(lambda g=g: I(f"v_permlane32_swap_b32 v{X+2*g+1}, v{X+2*g+3}"))
    for g in (0, 2):
        ops.append(lambda g=g: I(f"buffer_store_dwordx4 {R(X+2*g,4)}, v{vQoff}, {SR(sO)}, s{sQB} offen offset:{g*16}{STORE_FLAGS}" if sel == 0 else
                                 f"buffer_store_dwordx4 {R(X+2*g,4)}, v{vQoff}, {SR(sO)}, s{sT1} offen offset:{g*16}{STORE_FLAGS}"))
    return ops

def unit(kind, u):
    if u < 0: return dict(t=3, j=3, kb=1, vb=1, sb=3)
    if u > 15: return dict(t=0, j=0, kb=0, vb=0, sb=0)
    if kind == "mid": return dict(t=u & 3, j=u >> 2, kb=(u >> 2) & 1, vb=(u >> 2) & 1, sb=u & 3)
    return dict(t=2 * (u >> 3) + (u & 1), j=(u >> 1) & 3, kb=(u >> 1) & 1, vb=(u >> 1) & 1, sb=u & 3)

def phase(kind, u, pre=(), side=None, noqk=False):
    side = side or {}
    p, c, n = unit(kind, u - 1), unit(kind, u), unit(kind, u + 1)
    S = vS[c["sb"]]
    C(f"---- {kind} phase {u}")
    for f in pre: f()
    def E(*ks):
        for k in ks:
            vexp(S + k)
            for f in side.get(k, []): f()
    if not noqk:
        st.wait_lds([f"K{n['kb']}", f"Q{n['t']}"])
        mfma(vS[n["sb"]], vK[n["kb"]], vQ[n["t"]][0], None)
    E(0, 1, 2)
    if not noqk: mfma(vS[n["sb"]], vK[n["kb"]] + 4, vQ[n["t"]][1], vS[n["sb"]])
    E(3, 4, 5)
    smf32(vO[p["t"]], vV[p["vb"]] + 4, vS[p["sb"]] + 8)
    E(6, 7, 8)
    smf16(vL[p["t"]], vS[p["sb"]] + 8)
    E(9, 10)
    st.wait_lds(f"V{c['vb']}")
    smf32(vO[c["t"]], vV[c["vb"]], S)
    E(11, 12, 13)
    smf16(vL[c["t"]], S)
    E(14, 15)
def spread(side, ops, slots):
    n = len(slots); per = -(-len(ops) // n)
    for i, f in enumerate(ops):
        side.setdefault(slots[min(i // per, n - 1)], []).append(f)

hdr = open("cdna_kernels/%s.s.ref" % NAME).read().split("\n")
for l in hdr:
    if l.startswith("; @launch"): st.raw("; @launch grid=(256,1,1) block=(512,1,1) lds=135168")
    elif l.startswith(";"): st.raw(l)
    else: break
for l in ['.amdgcn_target "amdgcn-amd-amdhsa--gfx950"', ".text", f".globl {NAME}_kernel", ".p2align 8",
          f".type {NAME}_kernel,@function", f"{NAME}_kernel:"]: st.raw(l)

I("s_load_dwordx8 s[4:11], s[0:1], 0")
if STAMP:
    I("s_load_dwordx2 s[44:45], s[0:1], 40")
    I("s_memtime s[46:47]"); I("s_memrealtime s[48:49]")
if "dbg" in OPT:
    I("s_load_dwordx2 s[44:45], s[0:1], 32")
    I("s_memtime s[46:47]"); I("s_memrealtime s[48:49]")
I("s_cmp_ge_u32 s2, 256")
I("s_cbranch_scc1 L_end")
if "pf" in OPT:
    I("s_getpc_b64 s[40:41]")
    Lb("L_pc")
    I("v_lshlrev_b32 v1, 5, v0")
    I("v_min_u32 v1, L_end-L_pc-12, v1")
    I(f"global_load_dword v{vS[0]}, v1, s[40:41]")
I("v_lshrrev_b32 v1, 6, v0")
I("v_and_b32 v2, 63, v0")
I("s_and_b32 s3, s2, 7")
I(f"s_lshr_b32 s{sT0}, s2, 3")
I(f"v_readfirstlane_b32 s{sWave}, v1")
I("s_lshl_b32 s3, s3, 3")
I(f"s_lshr_b32 s{sT1}, s{sT0}, 2")
I(f"s_add_u32 s3, s3, s{sT1}")
I(f"s_lshl_b32 s{sHead}, s3, 17")
I(f"s_and_b32 s{sT0}, s{sT0}, 3")
I(f"s_lshl_b32 s{sT0}, s{sT0}, 15")
I(f"s_add_u32 s{sT0}, s{sHead}, s{sT0}")
I(f"s_and_b32 s{sT1}, s{sWave}, 3")
I(f"s_lshl_b32 s{sT1}, s{sT1}, 13")
I(f"s_add_u32 s{sT0}, s{sT0}, s{sT1}")
I(f"s_lshr_b32 s{sHk}, s{sWave}, 2")
I(f"s_lshl_b32 s{sT1}, s{sHk}, 11")
I(f"s_add_u32 s{sQA}, s{sT0}, s{sT1}")
I(f"s_xor_b32 s{sT1}, s{sT1}, 2048")
I(f"s_add_u32 s{sQB}, s{sT0}, s{sT1}")
I(f"s_lshl_b32 s{sM}, s{sWave}, 11")
I(f"s_add_u32 s{sG}, s{sHead}, s{sM}")
I("v_and_b32 v3, 31, v2")
I("v_lshrrev_b32 v4, 5, v2")
I("v_lshlrev_b32 v5, 6, v3")
I(f"v_lshl_add_u32 v{vQoff}, v4, 4, v5")
I("v_lshrrev_b32 v6, 4, v2")
I("v_and_b32 v7, 3, v2")
I("v_xor_b32 v6, v6, v7")
I("v_lshrrev_b32 v7, 2, v2")
I("v_lshlrev_b32 v7, 6, v7")
I(f"v_lshl_add_u32 v{vDK}, v6, 4, v7")
I(f"v_lshlrev_b32 v{vDV}, 4, v2")
for sr in (sQ, sK, sV, sO):
    I(f"s_mov_b32 s{sr+2}, 8388608")
    I(f"s_mov_b32 s{sr+3}, 0x00020000")
I("s_waitcnt lgkmcnt(0)")
for sr, p in ((sQ, 4), (sK, 6), (sV, 8), (sO, 10)):
    I(f"s_mov_b32 s{sr}, s{p}")
    I(f"s_and_b32 s{sr+1}, s{p+1}, 0xffff")
if STAMP:
    I(f"s_mov_b32 s{pst[0]}, s46"); I(f"s_mov_b32 s{pst[0]+1}, s48"); pst[0] += 2
for c in range(2):
    I(f"buffer_load_dwordx4 {R(vS[2]+4*c,4)}, v{vDV}, {SR(sQ)}, s{sQA} offen offset:{c*1024}")
dma_k(); dma_v()
I(f"s_lshl_b32 s{sT1}, s{sHk}, 11")
I("v_lshrrev_b32 v6, 2, v3")
I("v_and_b32 v6, 3, v6")
I("v_xor_b32 v6, v6, v4")
I(f"v_lshl_add_u32 v{vKl0}, v6, 4, v5")
I(f"v_add_u32 v{vKl0}, s{sT1}, v{vKl0}")
I(f"v_xor_b32 v{vKl1}, 32, v{vKl0}")
I("v_and_b32 v6, 15, v2")
I("v_lshrrev_b32 v7, 2, v6")
I("v_lshl_add_u32 v7, v4, 3, v7")
I("v_lshlrev_b32 v7, 6, v7")
I("v_and_b32 v6, 3, v6")
I("v_lshl_add_u32 v7, v6, 3, v7")
I("v_bfe_u32 v6, v2, 4, 1")
I(f"v_lshl_add_u32 v{vVl}, v6, 5, v7")
I(f"v_add_u32 v{vVl}, s{sT1}, v{vVl}")
I(f"v_mov_b32 v{vKa0}, v{vKl0}")
I(f"v_mov_b32 v{vKa1}, v{vKl1}")
I(f"v_mov_b32 v{vVa}, v{vVl}")
I(f"v_mov_b32 v{vIdx}, 0xdddddddd")
I("v_lshlrev_b32 v6, 9, v4")
I(f"v_lshl_add_u32 v{vFV}, v3, 1, v6")
I(f"s_lshl_b32 s{sT0}, s{sWave}, 12")
I(f"v_add_u32 v{vXw}, s{sT0}, v{vDV}")
I(f"v_xor_b32 v{vXr}, 0x4000, v{vXw}")
I(f"s_and_b32 s{sT0}, s{sWave}, 3")
I(f"s_lshl_b32 s{sT0}, s{sT0}, 13")
I(f"s_add_u32 s{sT0}, s{sT0}, 0x18000")
I(f"s_add_u32 s{sT1}, s{sT1}, s{sT0}")
I(f"v_add_u32 v{vHw}, s{sT1}, v{vDK}")
I(f"v_add_u32 v{vHr}, s{sT0}, v{vKl0}")
I(f"v_xor_b32 v0, 32, v{vHr}")
I(f"v_xor_b32 v1, 0x800, v{vHr}")
I(f"v_xor_b32 v5, 0x820, v{vHr}")
I(f"s_lshl_b32 s{sT0}, s{sWave}, 8")
I(f"s_add_u32 s{sT0}, s{sT0}, 0x20000")
I(f"v_lshl_add_u32 v{vLw}, v2, 2, s{sT0}")
I(f"v_xor_b32 v{vLr}, 0x400, v{vLw}")
I("v_and_b32 v6, 7, v2")
I("v_cmp_eq_u32 vcc, 0, v6")
I(f"v_cmp_eq_u32 s[{sTmp}:{sTmp+1}], 4, v6")
I("v_mov_b32 v7, 0x3f803f80")
I(f"s_mov_b32 s{sStage}, 1")
I(f"s_mov_b32 s{sSlot}, 0")
I(f"v_cndmask_b32 v{vOnes}, 0, v7, vcc")
I(f"v_cndmask_b32 v{vOnes+1}, 0, v7, vcc")
I(f"v_cndmask_b32 v{vOnes+2}, 0, v7, s[{sTmp}:{sTmp+1}]")
I(f"v_cndmask_b32 v{vOnes+3}, 0, v7, s[{sTmp}:{sTmp+1}]")
I(f"v_mov_b32 v{vCs}, {f32hex(CSCALE)}")
I(f"v_mov_b32 v{vCs+1}, v{vCs}")
I(f"v_mov_b32 v{vT+7}, 0x7f800000")
I(f"s_mov_b64 s[{sOK}:{sOK+1}], -1")
I(f"s_add_u32 s{sT1}, s{sQB}, 4096")
assert vL[0] == vO[3] + 16
for r in range(vO[0], vL[3] + 4, 2): I(f"v_mov_b64 {R(r,2)}, 0")
for i in range(8, 16, 2): I(f"v_mov_b64 {R(vS[3]+i,2)}, 0")
for i in range(4, 8, 2): I(f"v_mov_b64 {R(vV[1]+i,2)}, 0")
def qscale_lin(Q, T, off):
    ops = []
    for i in range(4):
        ops.append(lambda i=i: I(f"v_lshlrev_b32 v{T+2*i}, 16, v{Q+i}"))
        ops.append(lambda i=i: I(f"v_and_b32 v{T+2*i+1}, 0xffff0000, v{Q+i}"))
    for i in range(4):
        ops.append(lambda i=i: I(f"v_pk_mul_f32 {R(T+2*i,2)}, {R(T+2*i,2)}, {R(vCs,2)}"))
    for i in range(4):
        ops.append(lambda i=i: I(f"v_cvt_pk_bf16_f32 v{Q+i}, v{T+2*i}, v{T+2*i+1}"))
    ops.append(lambda: DS(f"ds_write_b128 v{vHw}, {R(Q,4)} offset:{off}", "qw"))
    return ops
qa = [[vHr, 0], [1, 5]]
def qfrag(t):
    for j in range(2):
        DS(f"ds_read_b128 {R(vQ[t][j],4)}, v{qa[t&1][j]} offset:{(t>>1)*4096}", f"Q{t}")
if "noearly" not in OPT:
    I("s_barrier")
I(f"s_add_u32 s{sT0}, s{sQA}, 4096")
for c in range(2):
    I(f"buffer_load_dwordx4 {R(vQ[2][c],4)}, v{vDV}, {SR(sQ)}, s{sT0} offen offset:{c*1024}")
stamp()
for c in range(2):
    I(f"s_waitcnt vmcnt({7-c})")
    if c == 0: stamp()
    for f in qscale_lin(vS[2] + 4 * c, vS[1] + 8 * c, c * 1024): f()
st.wait_all_lds("vmcnt(2)")
stamp()
I("s_barrier")
stamp()
for f in kreads(0, 0): f()
qfrag(0); qfrag(1)
for f in vreads(0, 0) + kreads(1, 1): f()
st.wait_lds(["K0", "Q0"])
mfma(vS[0], vK[0], vQ[0][0], None)
mfma(vS[0], vK[0] + 4, vQ[0][1], vS[0])
I("s_nop 7")
I("s_nop 2")
stamp()

if "prio47" in OPT:
    I(f"s_cmp_ge_u32 s{sWave}, 4")
    I("s_cbranch_scc0 L_noprio")
    I("s_setprio 1")
    Lb("L_noprio")
def pm_loads(u, side, last):
    if u & 1 == 0: return
    p = u >> 1
    if p + 1 <= 7 or not last: spread(side, vreads((p + 1) & 3, (p + 1) & 1), [0, 1, 3, 4])
    if p + 2 <= 7 or not last: spread(side, kreads((p + 2) & 3, p & 1), [6, 7])
assert vQ[3][1] == vQ[3][0] + 4
for u in range(16):
    side = {}; pre = []
    pm_loads(u, side, False)
    if u == 4:
        pre.append(lambda: I("s_waitcnt vmcnt(0)"))
        spread(side, qscale_lin(vQ[2][0], vQ[3][0], 4096) + qscale_lin(vQ[2][1], vQ[3][0], 5120), list(range(0, 16)))
    if u == 6:
        pre += [lambda: st.wait_lds("qw"), lambda: I("s_barrier"), lambda: qfrag(2), lambda: qfrag(3), dma_k]
    if u == 7: pre.append(dma_v)
    if u == 13: pre += [lambda: I("s_waitcnt vmcnt(0)"), lambda: I("s_barrier"), next_slot, addr_k]
    if u == 14: pre.append(dma_k)
    if u == 15: pre += [addr_v, dma_v]
    phase("first", u, pre, side)
stamp()
entry_state = list(st.lds)

st.raw(".p2align 6")
Lb("L_loop")
loop_start = len(st.lines)
for u in range(16):
    side = {}; pre = []
    t, j = u & 3, u >> 2
    if u == 11:
        pre += [lambda: I("s_waitcnt vmcnt(0)"), lambda: I("s_barrier"), next_slot, addr_k, addr_v]
    if u == 12:
        pre += [lambda: I(f"s_cmp_lt_u32 s{sStage}, 6"), lambda: I("s_cbranch_scc0 L_nodma1"), dma_k, lambda: Lb("L_nodma1")]
    if u == 13:
        pre += [lambda: I(f"s_cmp_lt_u32 s{sStage}, 6"), lambda: I("s_cbranch_scc0 L_nodma2"), dma_v, lambda: Lb("L_nodma2")]
    if t == 3: spread(side, kreads((j + 2) & 3, j & 1), [0, 1])
    if t == 2: spread(side, vreads((j + 1) & 3, (j + 1) & 1), [0, 1, 3, 4])
    phase("mid", u, pre, side)
if STAMP:
    I("s_memtime s[46:47]"); I("s_memrealtime s[48:49]"); st.wait_all_lds()
    I(f"s_lshl_b32 m0, s{sStage}, 1"); I("s_nop 0")
    I("s_movreld_b32 s78, s46"); I("s_movreld_b32 s79, s48")
assert st.lds == entry_state, (st.lds, entry_state)
I(f"s_add_u32 s{sStage}, s{sStage}, 1")
I(f"s_cmp_lt_u32 s{sStage}, 7")
I("s_cbranch_scc1 L_loop")
loop_end = len(st.lines)

fin1 = final_ops(1, 0)
for u in range(16):
    side = {}; pre = []
    pm_loads(u, side, True)
    if u == 8: spread(side, send_ops(0, 0), [2, 3, 4, 5, 6])
    if u == 10:
        pre += [lambda: st.wait_lds("xw"), lambda: I("s_barrier")]
        spread(side, recv_ops(1, 0), [0, 1, 2, 3, 4])
    if u == 11: spread(side, fin1[:24], list(range(2, 16)))
    if u == 12: spread(side, fin1[24:], list(range(0, 16)))
    if u == 15: spread(side, send_ops(2, 1), [15])
    phase("last", u, pre, side, noqk=(u == 15))
stamp()
smf32(vO[3], vV[1] + 4, vS[3] + 8)
smf16(vL[3], vS[3] + 8)
st.wait_lds("xw")
I("s_barrier")
stamp()
for f in recv_ops(3, 1): f()
I("s_nop 3")
for f in final_ops(3, 1): f()
I(f"s_cmp_eq_u64 s[{sOK}:{sOK+1}], -1")
I("s_cbranch_scc0 L_fallback")
Lb("L_done")
if "dbg" in OPT:
    I("s_waitcnt vmcnt(0)")
    I("s_memtime s[50:51]"); I("s_memrealtime s[52:53]"); I("s_waitcnt lgkmcnt(0)")
    I("s_sub_u32 s50, s50, s46"); I("s_sub_u32 s55, s52, s48")
    I("s_cmp_lt_u32 s2, 8"); I("s_cbranch_scc0 L_end"); I(f"s_cmp_eq_u32 s{sWave}, 7"); I("s_cbranch_scc0 L_end")
    I("s_lshl_b32 s54, s2, 3")
    I("v_mov_b32 v4, s54"); I("v_mov_b32 v2, s50"); I("v_mov_b32 v3, s55")
    I("global_store_dwordx2 v4, v[2:3], s[44:45]")
if STAMP:
    stamp()
    I("s_waitcnt vmcnt(0)")
    stamp()
    I("s_lshl_b32 s50, s2, 3"); I(f"s_add_u32 s50, s50, s{sWave}"); I("s_lshl_b32 s50, s50, 8")
    order = list(range(52, 52 + 14, 2)) + list(range(80, 92, 2)) + list(range(52 + 14, pst[0], 2))
    for k, p in enumerate(order):
        I(f"v_mov_b32 v4, s{p}"); I(f"v_mov_b32 v5, s{p+1}"); I("v_mov_b32 v6, s50")
        I(f"global_store_dwordx2 v6, v[4:5], s[44:45] offset:{8*k}")
    print("stamps:", len(order))
Lb("L_end")
I("s_endpgm")
main_end = len(st.lines)

KT = [1, 3]
vC = [vS[2], vS[3]]
def crosshalf_to_C(t):
    m = vT + 4 + t
    I(f"v_mov_b32 v{vT+6}, v{m}")
    I("s_nop 1")
    I(f"v_permlane32_swap_b32 v{vT+6}, v{m}")
    I("s_nop 1")
    I(f"v_max_f32 v{m}, v{m}, v{vT+6}")
    for i in range(16):
        I(f"v_sub_f32 v{vC[t]+i}, 0, v{m}")
Lb("L_fallback")
I(f"s_mov_b32 s{sG}, s{sHead}")
I(f"s_mov_b32 s{sStage}, 0")
I(f"v_mov_b32 v{vT+4}, 0xff800000")
I(f"v_mov_b32 v{vT+5}, 0xff800000")
Lb("L_fb1")
for j in range(2):
    I(f"buffer_load_dwordx4 {R(vK[0]+4*j,4)}, v{vQoff}, {SR(sK)}, s{sG} offen offset:{j*32}")
I("s_waitcnt vmcnt(0)")
for t in range(2):
    mfma(vS[t], vK[0], vQ[KT[t]][0], None)
    mfma(vS[t], vK[0] + 4, vQ[KT[t]][1], vS[t])
I("s_nop 15")
I("s_nop 3")
for t in range(2):
    m = vT + 4 + t
    for k in range(0, 16, 2):
        I(f"v_max3_f32 v{m}, v{m}, v{vS[t]+k}, v{vS[t]+k+1}")
I(f"s_add_u32 s{sG}, s{sG}, 2048")
I(f"s_add_u32 s{sStage}, s{sStage}, 1")
I(f"s_cmp_lt_u32 s{sStage}, 64")
I("s_cbranch_scc1 L_fb1")
crosshalf_to_C(0)
crosshalf_to_C(1)
for t in KT:
    for i in range(16): I(f"v_mov_b32 v{vO[t]+i}, 0")
    for i in range(4): I(f"v_mov_b32 v{vL[t]+i}, 0")
I(f"s_mov_b32 s{sG}, s{sHead}")
I(f"s_mov_b32 s{sStage}, 0")
Lb("L_fb2")
for j in range(2):
    I(f"buffer_load_dwordx4 {R(vK[0]+4*j,4)}, v{vQoff}, {SR(sK)}, s{sG} offen offset:{j*32}")
for j in range(2):
    for e in range(8):
        I(f"buffer_load_ushort v{vO[0]+8*j+e}, v{vFV}, {SR(sV)}, s{sG} offen offset:{(16*j+e)*64}")
I("s_waitcnt vmcnt(0)")
for i in range(8):
    I(f"v_lshl_or_b32 v{vV[0]+i}, v{vO[0]+2*i+1}, 16, v{vO[0]+2*i}")
for t in range(2):
    mfma(vS[t], vK[0], vQ[KT[t]][0], vC[t])
    mfma(vS[t], vK[0] + 4, vQ[KT[t]][1], vS[t])
I("s_nop 15")
I("s_nop 3")
for t in range(2):
    for i in range(16): vexp(vS[t] + i)
I("s_nop 3")
for t in range(2):
    smf32(vO[KT[t]], vV[0], vS[t])
    smf32(vO[KT[t]], vV[0] + 4, vS[t] + 8)
    smf16(vL[KT[t]], vS[t])
    smf16(vL[KT[t]], vS[t] + 8)
I(f"s_add_u32 s{sG}, s{sG}, 2048")
I(f"s_add_u32 s{sStage}, s{sStage}, 1")
I(f"s_cmp_lt_u32 s{sStage}, 64")
I("s_nop 15")
I("s_cbranch_scc1 L_fb2")
I("s_nop 15")
for sel, t in enumerate(KT):
    I(f"v_rcp_f32 v{vT+2}, v{vL[t]}")
    I("s_nop 0")
    I(f"v_mov_b32 v{vT+3}, v{vT+2}")
    for f in norm_store_ops(t, sel): f()
    I("s_nop 1")
I("s_branch L_done")

nv = (NVGPR + 3) // 4 * 4
for l in ['.section .rodata,"a"', ".p2align 6", f".amdhsa_kernel {NAME}_kernel",
          f"  .amdhsa_next_free_vgpr {nv}", f"  .amdhsa_next_free_sgpr {100 if STAMP else 64}", f"  .amdhsa_accum_offset {nv}",
          "  .amdhsa_group_segment_fixed_size 0", "  .amdhsa_kernarg_size 48", "  .amdhsa_user_sgpr_count 2",
          "  .amdhsa_user_sgpr_kernarg_segment_ptr 1", "  .amdhsa_system_sgpr_workgroup_id_x 1",
          ".end_amdhsa_kernel", ""]: st.raw(l)
L = st.lines
bad = check_hazards(L, "linear") + check_hazards(L[loop_start:loop_end] * 2, "loop wrap")
assert bad == 0
dst = sys.argv[1] if len(sys.argv) > 1 else f"cdna_kernels/{NAME}.s"
open(dst, "w").write("\n".join(L))
print("wrote", dst, "vgprs", NVGPR)
```
